```python
import torch

def _softmax(x, axis=-1):
    return torch.softmax(x, dim=axis)
def _gelu(x):
    return torch.nn.functional.gelu(x, approximate="tanh")
def _silu(x):
    return torch.nn.functional.silu(x)
def _sigmoid(x):
    return torch.sigmoid(x)
def _layernorm(x, axis=-1, eps=1e-5):
    m = x.mean(dim=axis, keepdim=True)
    v = x.var(dim=axis, keepdim=True, unbiased=False)
    return (x - m) / torch.sqrt(v + eps)
def _scatter_add(tgt, idx, src, axis=0):
    return tgt.clone().index_add_(axis, idx, src)
def _segment_sum(src, seg, n):
    out = torch.zeros((n,) + src.shape[1:], dtype=src.dtype)
    return out.index_add_(0, seg, src)
def _pad(x, pw):
    flat = tuple(v for pair in reversed(pw) for v in pair)
    return torch.nn.functional.pad(x, flat)

kernel_name = 'sequential_preLN__sliding_block_cached__dense_activation_squared_relu__decode'

def setup_inputs():

    _w = (lambda a: (lambda t: t.to(torch.bfloat16) if t.is_floating_point() else t)(torch.as_tensor(a)))
    def _A_setup():
        B, Sq, D = 1, 1, 576
        Hq, Hkv, Sk, Dh = 32, 16, 65536, 128
        assert Hq % Hkv == 0, (Hq, Hkv)
        return {
            "x": _w((lambda *s: torch.randn(*s, dtype=torch.bfloat16) * 0.05)(B, Sq, D)),
            "k_cache": _w((lambda *s: torch.randn(*s, dtype=torch.bfloat16) * 3.2)(B, Hkv, Sk, Dh)),
            "v_cache": _w((lambda *s: torch.randn(*s, dtype=torch.bfloat16) * 0.4)(B, Hkv, Sk, Dh)),
            "wq": _w((lambda *s: torch.randn(*s, dtype=torch.bfloat16) * 3.2)(D, Hq * Dh) * (D ** -0.5)),
            "wo": _w((lambda *s: torch.randn(*s, dtype=torch.bfloat16) * 0.4)(Hq * Dh, D) * ((Hq * Dh) ** -0.5)),
        }
    _A_in = _A_setup()

    def _B_setup():
        B, S, D, F = 1, 1, 576, 4608
        return {
            "x": _w((lambda *s: torch.randn(*s, dtype=torch.bfloat16) * 0.05)(B, S, D)),
            "w1": _w((lambda *s: torch.randn(*s, dtype=torch.bfloat16) * 0.05)(D, F)),
            "b1": _w((lambda *s: torch.randn(*s, dtype=torch.bfloat16) * 0.8)(F)),
            "w2": _w((lambda *s: torch.randn(*s, dtype=torch.bfloat16) * 0.05)(F, D)),
            "b2": _w((lambda *s: torch.randn(*s, dtype=torch.bfloat16) * 3.2)(D)),
        }
    _B_in = _B_setup()

    return {
        "A_x": _A_in["x"],
        "A_k_cache": _A_in["k_cache"],
        "A_v_cache": _A_in["v_cache"],
        "A_wq": _A_in["wq"],
        "A_wo": _A_in["wo"],
        "B_x": _B_in["x"],
        "B_w1": _B_in["w1"],
        "B_b1": _B_in["b1"],
        "B_w2": _B_in["w2"],
        "B_b2": _B_in["b2"],
    }

def reference(A_x, A_k_cache, A_v_cache, A_wq, A_wo, B_x, B_w1, B_b1, B_w2, B_b2):
    def _A_ref(x, k_cache, v_cache, wq, wo):
        B, Sq, D = x.shape
        Hq, Dh = 32, 128
        Hkv, Sk = k_cache.shape[1], k_cache.shape[2]
        W = min(4096, max(256, Sk // 4))
        rep = Hq // Hkv
        q = (lambda x, *d: x.permute(*d))((x @ wq).reshape(B, Sq, Hq, Dh), 0, 2, 1, 3)
        k = (lambda x, n, axis: torch.repeat_interleave(x, n, dim=axis))(k_cache[:, :, Sk - W:, :], rep, axis=1)
        v = (lambda x, n, axis: torch.repeat_interleave(x, n, dim=axis))(v_cache[:, :, Sk - W:, :], rep, axis=1)
        scores = torch.einsum("bhqd,bhkd->bhqk", q, k) * (Dh ** -0.5)
        p = _softmax(scores, axis=-1)
        o = torch.einsum("bhqk,bhkd->bhqd", p, v)
        return (lambda x, *d: x.permute(*d))(o, 0, 2, 1, 3).reshape(B, Sq, Hq * Dh) @ wo

    def _B_ref(x, w1, b1, w2, b2):
        h = torch.einsum("bsd,df->bsf", x, w1) + b1
        zero = torch.zeros_like(h)
        r = torch.where(h > zero, h, zero)
        h = r * r
        out = torch.einsum("bsf,fd->bsd", h, w2) + b2
        return out

    x = A_x
    h = x + _A_ref(_layernorm(x, axis=-1), A_k_cache, A_v_cache, A_wq, A_wo)
    h2 = h + _B_ref(_layernorm(h, axis=-1), B_w1, B_b1, B_w2, B_b2)
    return h2
```

```python
import sys

NAME = "sequential_preLN__sliding_block_cached__dense_activation_squared_relu__decode"
OUT = "cdna_kernels/%s.s" % NAME

WS_QP = 0
WS_OP = 65536
WS_ML = WS_OP + 32 * 16 * 128 * 4
WS_A1 = WS_ML + 32 * 16 * 2 * 4
WS_A2 = WS_A1 + 16 * 576 * 4
WS_END = WS_A2 + 16 * 576 * 4

HEADER = open("cdna_kernels/%s.s.ref" % NAME).read().split("; Override launch geometry")[0]


class Asm:
    def __init__(self):
        self.lines = []

    def __call__(self, s):
        for ln in s.strip("\n").split("\n"):
            self.lines.append("    " + ln.strip())

    def label(self, name):
        self.lines.append(name + ":")

    def raw(self, s):
        self.lines.append(s)

    def text(self):
        return "\n".join(self.lines) + "\n"


def kernel_begin(a, name):
    a.raw(".p2align 8")
    a.raw(".globl %s" % name)
    a.raw(".type %s,@function" % name)
    a.label(name)


def kernel_desc(name, vgpr, sgpr=102):
    acc = (vgpr + 3) // 4 * 4
    return """.amdhsa_kernel %s
  .amdhsa_next_free_vgpr %d
  .amdhsa_next_free_sgpr %d
  .amdhsa_accum_offset %d
  .amdhsa_group_segment_fixed_size 0
  .amdhsa_kernarg_size 104
  .amdhsa_user_sgpr_count 2
  .amdhsa_user_sgpr_kernarg_segment_ptr 1
  .amdhsa_system_sgpr_workgroup_id_x 1
.end_amdhsa_kernel
""" % (name, vgpr, sgpr, acc)


def bf16_round(a, v, n=1):
    for i in range(n):
        a("v_cvt_pk_bf16_f32 v%d, v%d, v%d" % (v + i, v + i, v + i))
    for i in range(n):
        a("v_lshlrev_b32 v%d, 16, v%d" % (v + i, v + i))


def row_allreduce(a, v, op="add"):
    for r in (8, 4, 2, 1):
        a("s_nop 1")
        a("v_%s_f32_dpp v%d, v%d, v%d row_ror:%d row_mask:0xf bank_mask:0xf" % (op, v, v, v, r))


def wave_allreduce_to_sgpr(a, v, s, op="add"):
    row_allreduce(a, v, op)
    a("s_nop 1")
    a("v_readlane_b32 s%d, v%d, 0" % (s, v))
    a("v_readlane_b32 s%d, v%d, 16" % (s + 1, v))
    a("v_readlane_b32 s%d, v%d, 32" % (s + 2, v))
    a("v_readlane_b32 s%d, v%d, 48" % (s + 3, v))
    a("s_nop 1")
    a("v_mov_b32 v%d, s%d" % (v, s))
    a("v_%s_f32 v%d, s%d, v%d" % (op, v, s + 1, v))
    a("v_%s_f32 v%d, s%d, v%d" % (op, v, s + 2, v))
    a("v_%s_f32 v%d, s%d, v%d" % (op, v, s + 3, v))


def layernorm9(a, vx, vt, s):
    a("v_add_f32 v%d, v%d, v%d" % (vt, vx, vx + 1))
    for i in range(2, 9):
        a("v_add_f32 v%d, v%d, v%d" % (vt, vt, vx + i))
    wave_allreduce_to_sgpr(a, vt, s)
    a("v_mul_f32 v%d, 0x3ae38e39, v%d" % (vt, vt))
    a("v_sub_f32 v%d, v%d, v%d" % (vt + 2, vx, vt))
    a("v_mul_f32 v%d, v%d, v%d" % (vt + 1, vt + 2, vt + 2))
    for i in range(1, 9):
        a("v_sub_f32 v%d, v%d, v%d" % (vt + 2, vx + i, vt))
        a("v_fmac_f32 v%d, v%d, v%d" % (vt + 1, vt + 2, vt + 2))
    wave_allreduce_to_sgpr(a, vt + 1, s)
    a("v_mul_f32 v%d, 0x3ae38e39, v%d" % (vt + 1, vt + 1))
    bf16_round(a, vt, 2)
    a("v_add_f32 v%d, 0x3727c5ac, v%d" % (vt + 1, vt + 1))
    bf16_round(a, vt + 1)
    a("v_sqrt_f32 v%d, v%d" % (vt + 1, vt + 1))
    a("s_nop 0")
    bf16_round(a, vt + 1)
    a("v_rcp_f32 v%d, v%d" % (vt + 2, vt + 1))
    a("s_nop 0")
    a("v_fma_f32 v%d, -v%d, v%d, 1.0" % (vt + 3, vt + 1, vt + 2))
    a("v_fmac_f32 v%d, v%d, v%d" % (vt + 2, vt + 3, vt + 2))
    for i in range(9):
        a("v_sub_f32 v%d, v%d, v%d" % (vx + i, vx + i, vt))
    bf16_round(a, vx, 9)
    for i in range(9):
        a("v_mul_f32 v%d, v%d, v%d" % (vt + 3, vx + i, vt + 2))
        a("v_fma_f32 v%d, -v%d, v%d, v%d" % (vx + i, vt + 1, vt + 3, vx + i))
        a("v_fma_f32 v%d, v%d, v%d, v%d" % (vx + i, vx + i, vt + 2, vt + 3))
    bf16_round(a, vx, 9)


def gen_k1(a):
    name = "k1_qproj_kernel"
    kernel_begin(a, name)
    a("""
    s_cmp_ge_u32 s2, 128
    s_cbranch_scc1 K1_END
    s_load_dwordx2 s[4:5], s[0:1], 0
    s_load_dwordx2 s[6:7], s[0:1], 24
    s_load_dwordx2 s[8:9], s[0:1], 96
    s_and_b32 s10, s2, 31
    s_lshr_b32 s11, s2, 5
    s_mul_i32 s12, s11, 144
    v_and_b32 v1, 15, v0
    v_lshrrev_b32 v2, 4, v0
    v_add_u32 v3, s12, v2
    v_lshlrev_b32 v4, 13, v3
    s_lshl_b32 s13, s10, 8
    v_lshlrev_b32 v5, 4, v1
    v_add3_u32 v4, v4, v5, s13
    v_and_b32 v6, 63, v0
    v_lshlrev_b32 v7, 1, v6
    s_waitcnt lgkmcnt(0)
    """)
    for i in range(9):
        a("global_load_ushort v%d, v7, s[4:5] offset:%d" % (10 + i, i * 128))
    for i in range(9):
        if i:
            a("v_add_u32 v4, 0x20000, v4")
        a("global_load_dwordx4 v[%d:%d], v4, s[6:7]" % (32 + 4 * i, 35 + 4 * i))
    a("""
    s_mul_i32 s14, s2, 576
    v_lshlrev_b32 v8, 2, v0
    v_add_u32 v8, s14, v8
    v_add_u32 v8, %d, v8
    v_mov_b32 v9, 0
    v_cmp_gt_u32 vcc, 144, v0
    s_and_saveexec_b64 s[16:17], vcc
    global_store_dword v8, v9, s[8:9]
    s_mov_b64 exec, s[16:17]
    """ % WS_A1)
    a("s_waitcnt vmcnt(10)")
    for i in range(9):
        a("v_lshlrev_b32 v%d, 16, v%d" % (10 + i, 10 + i))
    layernorm9(a, 10, 20, 20)
    a("v_lshlrev_b32 v24, 2, v6")
    for i in range(9):
        a("ds_write_b32 v24, v%d offset:%d" % (10 + i, i * 256))
    a("s_waitcnt lgkmcnt(0)")
    a("s_barrier")
    a("v_lshlrev_b32 v25, 2, v3")
    for i in range(9):
        a("ds_read_b32 v%d, v25 offset:%d" % (10 + i, i * 64))
    for j in range(8):
        a("v_mov_b32 v%d, 0" % (70 + j))
    a("s_waitcnt lgkmcnt(0)")
    for i in range(9):
        a("s_waitcnt vmcnt(%d)" % (8 - i))
        for j in range(4):
            w = 32 + 4 * i + j
            a("v_lshlrev_b32 v80, 16, v%d" % w)
            a("v_and_b32 v81, 0xffff0000, v%d" % w)
            a("v_fmac_f32 v%d, v%d, v80" % (70 + 2 * j, 10 + i))
            a("v_fmac_f32 v%d, v%d, v81" % (71 + 2 * j, 10 + i))
    a("""
    v_lshlrev_b32 v26, 9, v2
    v_lshl_add_u32 v26, v1, 5, v26
    ds_write_b128 v26, v[70:73] offset:2304
    ds_write_b128 v26, v[74:77] offset:2320
    s_waitcnt lgkmcnt(0)
    s_barrier
    v_cmp_gt_u32 vcc, 128, v0
    s_and_saveexec_b64 s[16:17], vcc
    s_cbranch_execz K1_END
    v_lshlrev_b32 v27, 2, v0
    """)
    for r in range(16):
        a("ds_read_b32 v%d, v27 offset:%d" % (32 + r, 2304 + r * 512))
    a("s_waitcnt lgkmcnt(0)")
    for r in range(1, 16):
        a("v_add_f32 v32, v32, v%d" % (32 + r))
    a("""
    s_lshl_b32 s14, s11, 14
    s_lshl_b32 s15, s10, 9
    s_add_u32 s14, s14, s15
    v_add_u32 v27, s14, v27
    global_store_dword v27, v32, s[8:9]
    """)
    a.label("K1_END")
    a("s_endpgm")
    return name, 96


def gen_k2(a):
    name = "k2_attn_kernel"
    kernel_begin(a, name)
    KB = 32
    VB = 64
    QT = 96
    a("""
    s_cmp_ge_u32 s2, 256
    s_cbranch_scc1 K2_END
    s_load_dwordx2 s[4:5], s[0:1], 8
    s_load_dwordx2 s[6:7], s[0:1], 16
    s_load_dwordx2 s[8:9], s[0:1], 96
    s_lshr_b32 s10, s2, 4
    s_and_b32 s11, s2, 15
    s_lshl_b32 s12, s10, 24
    s_lshl_b32 s13, s11, 16
    s_add_u32 s12, s12, s13
    s_add_u32 s12, s12, 0xf00000
    v_and_b32 v1, 63, v0
    v_lshlrev_b32 v1, 4, v1
    v_lshrrev_b32 v2, 6, v0
    v_lshl_add_u32 v1, v2, 13, v1
    v_add_u32 v1, s12, v1
    v_add_u32 v2, 0x1000, v1
    v_and_b32 v3, 15, v0
    v_lshlrev_b32 v4, 5, v3
    s_lshl_b32 s14, s10, 10
    v_add_u32 v4, s14, v4
    s_waitcnt lgkmcnt(0)
    """)
    for ks in range(4):
        for h in range(2):
            for half in range(2):
                idx = (ks * 2 + h) * 2 + half
                a("global_load_dwordx4 v[%d:%d], v4, s[8:9] offset:%d" %
                  (QT + 4 * idx, QT + 4 * idx + 3, h * 512 + half * 16 + (ks * 16384 if ks == 0 else 0)))
            if False:
                pass
        if ks < 3:
            a("v_add_u32 v4, 0x4000, v4")
    for i in range(8):
        a("global_load_dwordx4 v[%d:%d], v%d, s[4:5] offset:%d" % (KB + 4 * i, KB + 4 * i + 3, 1 if i < 4 else 2, (i % 4) * 1024))
    for i in range(8):
        a("global_load_dwordx4 v[%d:%d], v%d, s[6:7] offset:%d" % (VB + 4 * i, VB + 4 * i + 3, 1 if i < 4 else 2, (i % 4) * 1024))
    a("s_waitcnt vmcnt(16)")
    for h in range(2):
        for half in range(2):
            base = QT + 4 * (h * 2 + half)
            for ks in range(1, 4):
                o = QT + 4 * ((ks * 2 + h) * 2 + half)
                for j in range(4):
                    a("v_add_f32 v%d, v%d, v%d" % (base + j, base + j, o + j))
            a("v_cvt_pk_bf16_f32 v%d, v%d, v%d" % (10 + h * 4 + half * 2, base, base + 1))
            a("v_cvt_pk_bf16_f32 v%d, v%d, v%d" % (11 + h * 4 + half * 2, base + 2, base + 3))
    S = 100
    for i in range(8):
        a("s_waitcnt vmcnt(%d)" % (15 - i))
        for h in range(2):
            a("v_mov_b32 v%d, 0" % (S + h * 8 + i))
            for j in range(4):
                a("v_dot2c_f32_bf16 v%d, v%d, v%d" % (S + h * 8 + i, KB + 4 * i + j, 10 + h * 4 + j))
    for r in (8, 4, 2, 1):
        a("s_nop 1")
        for n in range(16):
            a("v_add_f32_dpp v%d, v%d, v%d row_ror:%d row_mask:0xf bank_mask:0xf" % (S + n, S + n, S + n, r))
    bf16_round(a, S, 16)
    for n in range(16):
        a("v_mul_f32 v%d, 0x3db504f3, v%d" % (S + n, S + n))
    bf16_round(a, S, 16)
    for h in range(2):
        a("v_max3_f32 v%d, v%d, v%d, v%d" % (20 + h, S + h * 8, S + h * 8 + 1, S + h * 8 + 2))
        a("v_max3_f32 v%d, v%d, v%d, v%d" % (20 + h, 20 + h, S + h * 8 + 3, S + h * 8 + 4))
        a("v_max3_f32 v%d, v%d, v%d, v%d" % (20 + h, 20 + h, S + h * 8 + 5, S + h * 8 + 6))
        a("v_max_f32 v%d, v%d, v%d" % (20 + h, 20 + h, S + h * 8 + 7))
    for h in range(2):
        for i in range(8):
            a("v_sub_f32 v%d, v%d, v%d" % (S + h * 8 + i, S + h * 8 + i, 20 + h))
            a("v_mul_f32 v%d, 0x3fb8aa3b, v%d" % (S + h * 8 + i, S + h * 8 + i))
            a("v_exp_f32 v%d, v%d" % (S + h * 8 + i, S + h * 8 + i))
    a("s_nop 0")
    for h in range(2):
        a("v_add_f32 v%d, v%d, v%d" % (22 + h, S + h * 8, S + h * 8 + 1))
        for i in range(2, 8):
            a("v_add_f32 v%d, v%d, v%d" % (22 + h, 22 + h, S + h * 8 + i))
    O = 120
    for n in range(16):
        a("v_mov_b32 v%d, 0" % (O + n))
    for i in range(8):
        a("s_waitcnt vmcnt(%d)" % (7 - i))
        for j in range(4):
            w = VB + 4 * i + j
            a("v_lshlrev_b32 v140, 16, v%d" % w)
            a("v_and_b32 v141, 0xffff0000, v%d" % w)
            for h in range(2):
                a("v_fmac_f32 v%d, v%d, v140" % (O + h * 8 + 2 * j, S + h * 8 + i))
                a("v_fmac_f32 v%d, v%d, v141" % (O + h * 8 + 2 * j + 1, S + h * 8 + i))
    a("""
    v_lshrrev_b32 v5, 4, v0
    v_lshlrev_b32 v6, 9, v5
    v_lshl_add_u32 v6, v3, 5, v6
    ds_write_b128 v6, v[120:123]
    ds_write_b128 v6, v[124:127] offset:16
    ds_write_b128 v6, v[128:131] offset:16384
    ds_write_b128 v6, v[132:135] offset:16400
    v_lshlrev_b32 v7, 3, v5
    v_mov_b32 v24, v20
    v_mov_b32 v25, v22
    v_mov_b32 v26, v21
    v_mov_b32 v27, v23
    ds_write_b64 v7, v[24:25] offset:32768
    ds_write_b64 v7, v[26:27] offset:33024
    s_waitcnt lgkmcnt(0)
    s_barrier
    v_cmp_gt_u32 vcc, 256, v0
    s_and_saveexec_b64 s[16:17], vcc
    s_cbranch_execz K2_END
    v_lshrrev_b32 v5, 7, v0
    v_and_b32 v6, 127, v0
    v_lshlrev_b32 v7, 8, v5
    v_lshlrev_b32 v8, 14, v5
    v_lshl_add_u32 v8, v6, 2, v8
    """)
    for r in range(32):
        a("ds_read_b64 v[%d:%d], v7 offset:%d" % (32 + 2 * r, 33 + 2 * r, 32768 + r * 8))
        a("ds_read_b32 v%d, v8 offset:%d" % (100 + r, r * 512))
    a("s_waitcnt lgkmcnt(0)")
    a("v_max_f32 v20, v32, v34")
    for r in range(2, 32):
        a("v_max_f32 v20, v20, v%d" % (32 + 2 * r))
    for r in range(32):
        a("v_sub_f32 v%d, v%d, v20" % (32 + 2 * r, 32 + 2 * r))
        a("v_mul_f32 v%d, 0x3fb8aa3b, v%d" % (32 + 2 * r, 32 + 2 * r))
        a("v_exp_f32 v%d, v%d" % (32 + 2 * r, 32 + 2 * r))
    a("s_nop 0")
    a("v_mul_f32 v21, v32, v33")
    a("v_mul_f32 v22, v32, v100")
    for r in range(1, 32):
        a("v_fmac_f32 v21, v%d, v%d" % (32 + 2 * r, 33 + 2 * r))
        a("v_fmac_f32 v22, v%d, v%d" % (32 + 2 * r, 100 + r))
    a("""
    s_lshl_b32 s14, s10, 1
    v_add_u32 v9, s14, v5
    v_lshl_add_u32 v9, v9, 4, s11
    v_lshlrev_b32 v10, 9, v9
    v_lshl_add_u32 v10, v6, 2, v10
    v_add_u32 v10, %d, v10
    global_store_dword v10, v22, s[8:9]
    v_lshlrev_b32 v11, 3, v9
    v_add_u32 v11, %d, v11
    v_cmp_eq_u32 vcc, 0, v6
    s_and_saveexec_b64 s[16:17], vcc
    global_store_dwordx2 v11, v[20:21], s[8:9]
    """ % (WS_OP, WS_ML))
    a.label("K2_END")
    a("s_endpgm")
    return name, 160


def rowgemv(a, lds_vec_off, lds_red_off, acc_off, sbase_ws, tagl):
    a("v_lshlrev_b32 v10, 2, v1")
    a("ds_read_b32 v11, v10 offset:%d" % lds_vec_off)
    a("ds_read_b32 v12, v10 offset:%d" % (lds_vec_off + 32))
    a("s_waitcnt vmcnt(0) lgkmcnt(0)")
    for j in range(8):
        w = 32 + j
        a("v_lshlrev_b32 v50, 16, v%d" % w)
        a("v_and_b32 v51, 0xffff0000, v%d" % w)
        if j < 4:
            a("v_mul_f32 v%d, v11, v50" % (40 + 2 * j))
            a("v_mul_f32 v%d, v11, v51" % (41 + 2 * j))
        else:
            a("v_fmac_f32 v%d, v12, v50" % (40 + 2 * (j - 4)))
            a("v_fmac_f32 v%d, v12, v51" % (41 + 2 * (j - 4)))
    a("""
    v_mul_u32_u24 v13, 2304, v1
    v_lshl_add_u32 v13, v2, 5, v13
    ds_write_b128 v13, v[40:43] offset:%d
    ds_write_b128 v13, v[44:47] offset:%d
    s_waitcnt lgkmcnt(0)
    s_barrier
    v_lshlrev_b32 v14, 2, v0
    """ % (lds_red_off, lds_red_off + 16))
    for r in range(8):
        a("ds_read_b32 v%d, v14 offset:%d" % (40 + r, lds_red_off + r * 2304))
    a("s_waitcnt lgkmcnt(0)")
    for r in range(1, 8):
        a("v_add_f32 v40, v40, v%d" % (40 + r))
    a("""
    s_mul_i32 s21, s20, 2304
    s_add_u32 s21, s21, %d
    v_add_u32 v14, s21, v14
    global_atomic_add_f32 v14, v40, s[%d:%d]
    """ % (acc_off, sbase_ws, sbase_ws + 1))


def gen_k3(a):
    name = "k3_wo_kernel"
    kernel_begin(a, name)
    a("""
    s_cmp_ge_u32 s2, 256
    s_cbranch_scc1 K3_END
    s_load_dwordx2 s[4:5], s[0:1], 32
    s_load_dwordx2 s[8:9], s[0:1], 96
    v_mul_u32_u24 v1, 911, v0
    v_lshrrev_b32 v1, 16, v1
    v_mul_u32_u24 v2, 72, v1
    v_sub_u32 v2, v0, v2
    s_mul_i32 s10, s2, 18432
    v_lshlrev_b32 v3, 4, v0
    v_add_u32 v3, s10, v3
    s_lshr_b32 s11, s2, 3
    s_and_b32 s12, s2, 7
    s_and_b32 s20, s2, 15
    s_waitcnt lgkmcnt(0)
    global_load_dwordx4 v[32:35], v3, s[4:5]
    v_add_u32 v3, 9216, v3
    global_load_dwordx4 v[36:39], v3, s[4:5]
    """)
    a("""
    v_and_b32 v4, 15, v0
    v_bfe_u32 v5, v0, 4, 2
    s_lshl_b32 s13, s11, 13
    s_lshl_b32 s14, s12, 6
    s_add_u32 s13, s13, s14
    s_add_u32 s13, s13, %d
    v_lshlrev_b32 v6, 11, v5
    v_lshl_add_u32 v6, v4, 2, v6
    v_add_u32 v6, s13, v6
    s_lshl_b32 s15, s11, 7
    s_add_u32 s15, s15, %d
    v_lshlrev_b32 v7, 5, v5
    v_add_u32 v7, s15, v7
    """ % (WS_OP, WS_ML))
    for j in range(4):
        a("global_load_dword v%d, v6, s[8:9] offset:%d" % (60 + j, j * 512))
    a("global_load_dwordx4 v[64:67], v7, s[8:9]")
    a("global_load_dwordx4 v[68:71], v7, s[8:9] offset:16")
    a("""
    v_and_b32 v8, 63, v0
    v_xor_b32 v9, 16, v8
    v_lshlrev_b32 v9, 2, v9
    v_xor_b32 v15, 32, v8
    v_lshlrev_b32 v15, 2, v15
    s_waitcnt vmcnt(0)
    v_max_f32 v72, v64, v66
    v_max3_f32 v72, v72, v68, v70
    ds_bpermute_b32 v73, v9, v72
    s_waitcnt lgkmcnt(0)
    v_max_f32 v72, v72, v73
    ds_bpermute_b32 v73, v15, v72
    s_waitcnt lgkmcnt(0)
    v_max_f32 v72, v72, v73
    """)
    for j in range(4):
        m = 64 + 2 * j
        a("v_sub_f32 v%d, v%d, v72" % (m, m))
        a("v_mul_f32 v%d, 0x3fb8aa3b, v%d" % (m, m))
        a("v_exp_f32 v%d, v%d" % (m, m))
    a("s_nop 0")
    a("v_mul_f32 v74, v64, v65")
    a("v_mul_f32 v75, v64, v60")
    for j in range(1, 4):
        a("v_fmac_f32 v74, v%d, v%d" % (64 + 2 * j, 65 + 2 * j))
        a("v_fmac_f32 v75, v%d, v%d" % (64 + 2 * j, 60 + j))
    a("""
    ds_bpermute_b32 v76, v9, v74
    ds_bpermute_b32 v77, v9, v75
    s_waitcnt lgkmcnt(0)
    v_add_f32 v74, v74, v76
    v_add_f32 v75, v75, v77
    ds_bpermute_b32 v76, v15, v74
    ds_bpermute_b32 v77, v15, v75
    s_waitcnt lgkmcnt(0)
    v_add_f32 v74, v74, v76
    v_add_f32 v75, v75, v77
    v_rcp_f32 v76, v74
    s_nop 0
    v_fma_f32 v77, -v74, v76, 1.0
    v_fmac_f32 v76, v77, v76
    v_mul_f32 v75, v75, v76
    """)
    bf16_round(a, 75)
    a("""
    v_lshlrev_b32 v16, 2, v4
    ds_write_b32 v16, v75
    s_waitcnt lgkmcnt(0)
    s_barrier
    """)
    rowgemv(a, 0, 64, WS_A1, 8, "K3")
    a.label("K3_END")
    a("s_endpgm")
    return name, 96


def load_h(a, vh, vtmp, sx, sws):
    a("v_lshlrev_b32 v14, 2, v0")
    a("v_add_u32 v15, %d, v14" % WS_A1)
    for r in range(16):
        a("global_load_dword v%d, v15, s[%d:%d] offset:%d" % (vtmp + r, sws, sws + 1, 0))
        if r < 15:
            a("v_add_u32 v15, 2304, v15")
    a("v_lshlrev_b32 v16, 1, v0")
    a("global_load_ushort v%d, v16, s[%d:%d]" % (vtmp + 16, sx, sx + 1))
    a("s_waitcnt vmcnt(0)")
    for r in range(1, 16):
        a("v_add_f32 v%d, v%d, v%d" % (vtmp, vtmp, vtmp + r))
    bf16_round(a, vtmp)
    a("v_lshlrev_b32 v%d, 16, v%d" % (vtmp + 16, vtmp + 16))
    a("v_add_f32 v%d, v%d, v%d" % (vh, vtmp, vtmp + 16))
    bf16_round(a, vh)


def gen_k4(a):
    name = "k4_mlp_kernel"
    kernel_begin(a, name)
    a("""
    s_cmp_ge_u32 s2, 288
    s_cbranch_scc1 K4_END
    s_load_dwordx2 s[4:5], s[0:1], 0
    s_load_dwordx2 s[6:7], s[0:1], 48
    s_load_dwordx2 s[8:9], s[0:1], 96
    s_load_dwordx2 s[22:23], s[0:1], 56
    s_load_dwordx2 s[24:25], s[0:1], 64
    v_mul_u32_u24 v1, 911, v0
    v_lshrrev_b32 v1, 16, v1
    v_mul_u32_u24 v2, 72, v1
    v_sub_u32 v2, v0, v2
    s_and_b32 s20, s2, 15
    s_lshl_b32 s10, s2, 5
    v_lshrrev_b32 v3, 1, v0
    v_and_b32 v4, 1, v0
    v_mul_u32_u24 v5, 9216, v3
    v_lshl_add_u32 v5, v4, 4, v5
    v_add_u32 v5, s10, v5
    s_mul_i32 s11, s2, 18432
    v_lshlrev_b32 v6, 4, v0
    v_add_u32 v6, s11, v6
    s_waitcnt lgkmcnt(0)
    global_load_dwordx4 v[80:83], v5, s[6:7]
    v_add_u32 v5, 0x288000, v5
    global_load_dwordx4 v[84:87], v5, s[6:7]
    global_load_dwordx4 v[32:35], v6, s[24:25]
    v_add_u32 v6, 9216, v6
    global_load_dwordx4 v[36:39], v6, s[24:25]
    """)
    load_h(a, 60, 61, 4, 8)
    a("""
    ds_write_b32 v14, v60
    s_waitcnt lgkmcnt(0)
    s_barrier
    v_and_b32 v17, 63, v0
    v_lshlrev_b32 v17, 2, v17
    """)
    for i in range(9):
        a("ds_read_b32 v%d, v17 offset:%d" % (60 + i, i * 256))
    a("s_waitcnt lgkmcnt(0)")
    layernorm9(a, 60, 70, 26)
    a("s_barrier")
    for i in range(9):
        a("ds_write_b32 v17, v%d offset:%d" % (60 + i, i * 256))
    a("s_waitcnt lgkmcnt(0)")
    a("s_barrier")
    a("""
    v_lshlrev_b32 v18, 2, v3
    ds_read_b32 v19, v18
    ds_read_b32 v20, v18 offset:1152
    s_waitcnt lgkmcnt(0)
    """)
    for j in range(8):
        w = 80 + j
        a("v_lshlrev_b32 v50, 16, v%d" % w)
        a("v_and_b32 v51, 0xffff0000, v%d" % w)
        if j < 4:
            a("v_mul_f32 v%d, v19, v50" % (40 + 2 * j))
            a("v_mul_f32 v%d, v19, v51" % (41 + 2 * j))
        else:
            a("v_fmac_f32 v%d, v20, v50" % (40 + 2 * (j - 4)))
            a("v_fmac_f32 v%d, v20, v51" % (41 + 2 * (j - 4)))
    for r in (8, 4, 2):
        a("s_nop 1")
        for n in range(8):
            a("v_add_f32_dpp v%d, v%d, v%d row_ror:%d row_mask:0xf bank_mask:0xf" % (40 + n, 40 + n, 40 + n, r))
    a("""
    v_and_b32 v21, 63, v0
    v_xor_b32 v22, 16, v21
    v_lshlrev_b32 v22, 2, v22
    v_xor_b32 v23, 32, v21
    v_lshlrev_b32 v23, 2, v23
    """)
    for addr in (22, 23):
        for n in range(8):
            a("ds_bpermute_b32 v%d, v%d, v%d" % (50 + n, addr, 40 + n))
        a("s_waitcnt lgkmcnt(0)")
        for n in range(8):
            a("v_add_f32 v%d, v%d, v%d" % (40 + n, 40 + n, 50 + n))
    a("""
    v_lshrrev_b32 v24, 6, v0
    v_lshlrev_b32 v24, 6, v24
    v_lshl_add_u32 v24, v4, 5, v24
    v_cmp_gt_u32 vcc, 2, v21
    s_and_saveexec_b64 s[16:17], vcc
    ds_write_b128 v24, v[40:43] offset:2304
    ds_write_b128 v24, v[44:47] offset:2320
    s_mov_b64 exec, s[16:17]
    s_waitcnt lgkmcnt(0)
    s_barrier
    v_cmp_gt_u32 vcc, 16, v0
    s_and_saveexec_b64 s[16:17], vcc
    v_lshlrev_b32 v25, 2, v0
    """)
    for w in range(9):
        a("ds_read_b32 v%d, v25 offset:%d" % (40 + w, 2304 + w * 64))
    a("""
    v_lshlrev_b32 v26, 1, v0
    v_add_u32 v26, s10, v26
    global_load_ushort v49, v26, s[22:23]
    s_waitcnt vmcnt(0) lgkmcnt(0)
    """)
    for w in range(1, 9):
        a("v_add_f32 v40, v40, v%d" % (40 + w))
    bf16_round(a, 40)
    a("v_lshlrev_b32 v49, 16, v49")
    a("v_add_f32 v40, v40, v49")
    bf16_round(a, 40)
    a("v_max_f32 v40, 0, v40")
    a("v_mul_f32 v40, v40, v40")
    bf16_round(a, 40)
    a("""
    ds_write_b32 v25, v40 offset:2880
    s_mov_b64 exec, s[16:17]
    s_waitcnt lgkmcnt(0)
    s_barrier
    """)
    rowgemv(a, 2880, 2944, WS_A2, 8, "K4")
    a.label("K4_END")
    a("s_endpgm")
    return name, 96


def gen_k5(a):
    name = "k5_final_kernel"
    kernel_begin(a, name)
    a("""
    s_cmp_ge_u32 s2, 1
    s_cbranch_scc1 K5_END
    s_load_dwordx2 s[4:5], s[0:1], 0
    s_load_dwordx2 s[8:9], s[0:1], 96
    s_load_dwordx2 s[10:11], s[0:1], 72
    s_load_dwordx2 s[12:13], s[0:1], 80
    s_waitcnt lgkmcnt(0)
    """)
    load_h(a, 60, 61, 4, 8)
    a("v_add_u32 v15, %d, v14" % WS_A2)
    for r in range(16):
        a("global_load_dword v%d, v15, s[8:9]" % (61 + r))
        if r < 15:
            a("v_add_u32 v15, 2304, v15")
    a("global_load_ushort v77, v16, s[10:11]")
    a("s_waitcnt vmcnt(0)")
    for r in range(1, 16):
        a("v_add_f32 v61, v61, v%d" % (61 + r))
    bf16_round(a, 61)
    a("v_lshlrev_b32 v77, 16, v77")
    a("v_add_f32 v61, v61, v77")
    bf16_round(a, 61)
    a("v_add_f32 v61, v61, v60")
    a("v_cvt_pk_bf16_f32 v61, v61, v61")
    a("global_store_short v16, v61, s[12:13]")
    a.label("K5_END")
    a("s_endpgm")
    return name, 96


def main():
    a = Asm()
    launches = [
        ("k1_qproj_kernel", 128, 256, 2304 + 8192),
        ("k2_attn_kernel", 256, 512, 33280),
        ("k3_wo_kernel", 256, 576, 64 + 18432),
        ("k4_mlp_kernel", 288, 576, 2944 + 18432),
        ("k5_final_kernel", 1, 576, 0),
    ]
    hdr = HEADER
    for k, g, b, l in launches:
        hdr += "; @launch kernel=%s grid=(%d,1,1) block=(%d,1,1) lds=%d\n" % (k, g, b, l)
    a.raw(hdr + '.amdgcn_target "amdgcn-amd-amdhsa--gfx950"\n.text')
    descs = []
    for g in (gen_k1, gen_k2, gen_k3, gen_k4, gen_k5):
        n, v = g(a)
        descs.append(kernel_desc(n, v))
    a.raw('.section .rodata,"a"')
    for d in descs:
        a.raw(".p2align 6")
        a.raw(d)
    open(OUT, "w").write(a.text())
    print("wrote", OUT, len(a.text()), "bytes")


if __name__ == "__main__":
    main()
```

```python
import sys

NAME = "sequential_preLN__sliding_block_cached__dense_activation_squared_relu__decode"
OUT = "cdna_kernels/%s.s" % NAME

WS_QP = 0
WS_OP = 65536
WS_ML = WS_OP + 32 * 16 * 128 * 4
WS_A1 = WS_ML + 32 * 16 * 2 * 4
WS_A2 = WS_A1 + 16 * 576 * 4
WS_END = WS_A2 + 16 * 576 * 4

HEADER = open("cdna_kernels/%s.s.ref" % NAME).read().split("; Override launch geometry")[0]


class Asm:
    def __init__(self):
        self.lines = []

    def __call__(self, s):
        for ln in s.strip("\n").split("\n"):
            self.lines.append("    " + ln.strip())

    def label(self, name):
        self.lines.append(name + ":")

    def raw(self, s):
        self.lines.append(s)

    def text(self):
        return "\n".join(self.lines) + "\n"


def kernel_begin(a, name):
    a.raw(".p2align 8")
    a.raw(".globl %s" % name)
    a.raw(".type %s,@function" % name)
    a.label(name)


def kernel_desc(name, vgpr, sgpr=102):
    acc = (vgpr + 3) // 4 * 4
    return """.amdhsa_kernel %s
  .amdhsa_next_free_vgpr %d
  .amdhsa_next_free_sgpr %d
  .amdhsa_accum_offset %d
  .amdhsa_group_segment_fixed_size 0
  .amdhsa_kernarg_size 104
  .amdhsa_user_sgpr_count 2
  .amdhsa_user_sgpr_kernarg_segment_ptr 1
  .amdhsa_system_sgpr_workgroup_id_x 1
.end_amdhsa_kernel
""" % (name, vgpr, sgpr, acc)


STAMPS = False


def stamp(a, k):
    if STAMPS:
        a("s_memrealtime s[%d:%d]" % (60 + 2 * k, 61 + 2 * k))


def stamp_flush(a, n, label):
    if not STAMPS:
        return
    a("s_waitcnt lgkmcnt(0)")
    a("s_cmp_lg_u32 s2, 0")
    a("s_cbranch_scc1 %s" % label)
    a("s_load_dwordx2 s[58:59], s[0:1], 88")
    a("s_mov_b64 exec, 1")
    a("v_mov_b32 v160, 0")
    a("s_waitcnt lgkmcnt(0)")
    for k in range(n):
        a("v_mov_b32 v161, s%d" % (60 + 2 * k))
        a("global_store_dword v160, v161, s[58:59] offset:%d" % (4 * k))
    a.label(label)


def bf16_round(a, v, n=1):
    for i in range(n):
        a("v_cvt_pk_bf16_f32 v%d, v%d, v%d" % (v + i, v + i, v + i))
    for i in range(n):
        a("v_lshlrev_b32 v%d, 16, v%d" % (v + i, v + i))


def row_allreduce(a, v, op="add"):
    for r in (8, 4, 2, 1):
        a("s_nop 1")
        a("v_%s_f32_dpp v%d, v%d, v%d row_ror:%d row_mask:0xf bank_mask:0xf" % (op, v, v, v, r))


def wave_allreduce_to_sgpr(a, v, s, op="add"):
    row_allreduce(a, v, op)
    a("s_nop 1")
    a("v_readlane_b32 s%d, v%d, 0" % (s, v))
    a("v_readlane_b32 s%d, v%d, 16" % (s + 1, v))
    a("v_readlane_b32 s%d, v%d, 32" % (s + 2, v))
    a("v_readlane_b32 s%d, v%d, 48" % (s + 3, v))
    a("s_nop 1")
    a("v_mov_b32 v%d, s%d" % (v, s))
    a("v_%s_f32 v%d, s%d, v%d" % (op, v, s + 1, v))
    a("v_%s_f32 v%d, s%d, v%d" % (op, v, s + 2, v))
    a("v_%s_f32 v%d, s%d, v%d" % (op, v, s + 3, v))


def layernorm9(a, vx, vt, s):
    a("v_add_f32 v%d, v%d, v%d" % (vt, vx, vx + 1))
    for i in range(2, 9):
        a("v_add_f32 v%d, v%d, v%d" % (vt, vt, vx + i))
    wave_allreduce_to_sgpr(a, vt, s)
    a("v_mul_f32 v%d, 0x3ae38e39, v%d" % (vt, vt))
    a("v_sub_f32 v%d, v%d, v%d" % (vt + 2, vx, vt))
    a("v_mul_f32 v%d, v%d, v%d" % (vt + 1, vt + 2, vt + 2))
    for i in range(1, 9):
        a("v_sub_f32 v%d, v%d, v%d" % (vt + 2, vx + i, vt))
        a("v_fmac_f32 v%d, v%d, v%d" % (vt + 1, vt + 2, vt + 2))
    wave_allreduce_to_sgpr(a, vt + 1, s)
    a("v_mul_f32 v%d, 0x3ae38e39, v%d" % (vt + 1, vt + 1))
    bf16_round(a, vt, 2)
    a("v_add_f32 v%d, 0x3727c5ac, v%d" % (vt + 1, vt + 1))
    bf16_round(a, vt + 1)
    a("v_sqrt_f32 v%d, v%d" % (vt + 1, vt + 1))
    a("s_nop 0")
    bf16_round(a, vt + 1)
    a("v_rcp_f32 v%d, v%d" % (vt + 2, vt + 1))
    a("s_nop 0")
    a("v_fma_f32 v%d, -v%d, v%d, 1.0" % (vt + 3, vt + 1, vt + 2))
    a("v_fmac_f32 v%d, v%d, v%d" % (vt + 2, vt + 3, vt + 2))
    for i in range(9):
        a("v_sub_f32 v%d, v%d, v%d" % (vx + i, vx + i, vt))
    bf16_round(a, vx, 9)
    for i in range(9):
        a("v_mul_f32 v%d, v%d, v%d" % (vt + 3, vx + i, vt + 2))
        a("v_fma_f32 v%d, -v%d, v%d, v%d" % (vx + i, vt + 1, vt + 3, vx + i))
        a("v_fma_f32 v%d, v%d, v%d, v%d" % (vx + i, vx + i, vt + 2, vt + 3))
    bf16_round(a, vx, 9)


def gen_k1(a):
    name = "k1_qproj_kernel"
    kernel_begin(a, name)
    a("""
    s_cmp_ge_u32 s2, 128
    s_cbranch_scc1 K1_END
    s_load_dwordx2 s[4:5], s[0:1], 0
    s_load_dwordx2 s[6:7], s[0:1], 24
    s_load_dwordx2 s[8:9], s[0:1], 96
    s_and_b32 s10, s2, 31
    s_lshr_b32 s11, s2, 5
    s_mul_i32 s12, s11, 144
    v_and_b32 v1, 15, v0
    v_lshrrev_b32 v2, 4, v0
    v_add_u32 v3, s12, v2
    v_lshlrev_b32 v4, 13, v3
    s_lshl_b32 s13, s10, 8
    v_lshlrev_b32 v5, 4, v1
    v_add3_u32 v4, v4, v5, s13
    v_and_b32 v6, 63, v0
    v_lshlrev_b32 v7, 1, v6
    s_waitcnt lgkmcnt(0)
    """)
    for i in range(9):
        a("global_load_ushort v%d, v7, s[4:5] offset:%d" % (10 + i, i * 128))
    for i in range(9):
        if i:
            a("v_add_u32 v4, 0x20000, v4")
        a("global_load_dwordx4 v[%d:%d], v4, s[6:7] nt" % (32 + 4 * i, 35 + 4 * i))
    a("""
    s_mul_i32 s14, s2, 576
    v_lshlrev_b32 v8, 2, v0
    v_add_u32 v8, s14, v8
    v_add_u32 v8, %d, v8
    v_mov_b32 v9, 0
    v_cmp_gt_u32 vcc, 144, v0
    s_and_saveexec_b64 s[16:17], vcc
    global_store_dword v8, v9, s[8:9]
    s_mov_b64 exec, s[16:17]
    """ % WS_A1)
    a("s_waitcnt vmcnt(10)")
    for i in range(9):
        a("v_lshlrev_b32 v%d, 16, v%d" % (10 + i, 10 + i))
    layernorm9(a, 10, 20, 20)
    a("v_lshlrev_b32 v24, 2, v6")
    for i in range(9):
        a("ds_write_b32 v24, v%d offset:%d" % (10 + i, i * 256))
    a("s_waitcnt lgkmcnt(0)")
    a("s_barrier")
    a("v_lshlrev_b32 v25, 2, v3")
    for i in range(9):
        a("ds_read_b32 v%d, v25 offset:%d" % (10 + i, i * 64))
    for j in range(8):
        a("v_mov_b32 v%d, 0" % (70 + j))
    a("s_waitcnt lgkmcnt(0)")
    for i in range(9):
        a("s_waitcnt vmcnt(%d)" % (8 - i))
        for j in range(4):
            w = 32 + 4 * i + j
            a("v_lshlrev_b32 v80, 16, v%d" % w)
            a("v_and_b32 v81, 0xffff0000, v%d" % w)
            a("v_fmac_f32 v%d, v%d, v80" % (70 + 2 * j, 10 + i))
            a("v_fmac_f32 v%d, v%d, v81" % (71 + 2 * j, 10 + i))
    a("""
    v_lshlrev_b32 v26, 9, v2
    v_lshl_add_u32 v26, v1, 5, v26
    ds_write_b128 v26, v[70:73] offset:2304
    ds_write_b128 v26, v[74:77] offset:2320
    s_waitcnt lgkmcnt(0)
    s_barrier
    v_cmp_gt_u32 vcc, 128, v0
    s_and_saveexec_b64 s[16:17], vcc
    s_cbranch_execz K1_END
    v_lshlrev_b32 v27, 2, v0
    """)
    for r in range(16):
        a("ds_read_b32 v%d, v27 offset:%d" % (32 + r, 2304 + r * 512))
    a("s_waitcnt lgkmcnt(0)")
    for r in range(1, 16):
        a("v_add_f32 v32, v32, v%d" % (32 + r))
    a("""
    s_lshl_b32 s14, s11, 14
    s_lshl_b32 s15, s10, 9
    s_add_u32 s14, s14, s15
    v_add_u32 v27, s14, v27
    global_store_dword v27, v32, s[8:9]
    """)
    a.label("K1_END")
    a("s_endpgm")
    return name, 96


def gen_k2(a):
    name = "k2_attn_kernel"
    kernel_begin(a, name)
    KB = 32
    VB = 64
    QT = 96
    a("""
    s_cmp_ge_u32 s2, 256
    s_cbranch_scc1 K2_END
    s_load_dwordx2 s[4:5], s[0:1], 8
    s_load_dwordx2 s[6:7], s[0:1], 16
    s_load_dwordx2 s[8:9], s[0:1], 96
    s_lshr_b32 s10, s2, 4
    s_and_b32 s11, s2, 15
    s_lshl_b32 s12, s10, 24
    s_lshl_b32 s13, s11, 16
    s_add_u32 s12, s12, s13
    s_add_u32 s12, s12, 0xf00000
    v_and_b32 v1, 63, v0
    v_lshlrev_b32 v1, 4, v1
    v_lshrrev_b32 v2, 6, v0
    v_lshl_add_u32 v1, v2, 13, v1
    v_add_u32 v1, s12, v1
    v_add_u32 v2, 0x1000, v1
    v_and_b32 v3, 15, v0
    v_lshlrev_b32 v4, 5, v3
    s_lshl_b32 s14, s10, 10
    v_add_u32 v4, s14, v4
    s_waitcnt lgkmcnt(0)
    """)
    for ks in range(4):
        for h in range(2):
            for half in range(2):
                idx = (ks * 2 + h) * 2 + half
                a("global_load_dwordx4 v[%d:%d], v4, s[8:9] offset:%d" %
                  (QT + 4 * idx, QT + 4 * idx + 3, h * 512 + half * 16 + (ks * 16384 if ks == 0 else 0)))
            if False:
                pass
        if ks < 3:
            a("v_add_u32 v4, 0x4000, v4")
    for i in range(8):
        a("global_load_dwordx4 v[%d:%d], v%d, s[4:5] offset:%d nt" % (KB + 4 * i, KB + 4 * i + 3, 1 if i < 4 else 2, (i % 4) * 1024))
    for i in range(8):
        a("global_load_dwordx4 v[%d:%d], v%d, s[6:7] offset:%d nt" % (VB + 4 * i, VB + 4 * i + 3, 1 if i < 4 else 2, (i % 4) * 1024))
    a("s_waitcnt vmcnt(16)")
    for h in range(2):
        for half in range(2):
            base = QT + 4 * (h * 2 + half)
            for ks in range(1, 4):
                o = QT + 4 * ((ks * 2 + h) * 2 + half)
                for j in range(4):
                    a("v_add_f32 v%d, v%d, v%d" % (base + j, base + j, o + j))
            a("v_cvt_pk_bf16_f32 v%d, v%d, v%d" % (10 + h * 4 + half * 2, base, base + 1))
            a("v_cvt_pk_bf16_f32 v%d, v%d, v%d" % (11 + h * 4 + half * 2, base + 2, base + 3))
    S = 100
    for i in range(8):
        a("s_waitcnt vmcnt(%d)" % (15 - i))
        for h in range(2):
            a("v_mov_b32 v%d, 0" % (S + h * 8 + i))
            for j in range(4):
                a("v_dot2c_f32_bf16 v%d, v%d, v%d" % (S + h * 8 + i, KB + 4 * i + j, 10 + h * 4 + j))
    for r in (8, 4, 2, 1):
        a("s_nop 1")
        for n in range(16):
            a("v_add_f32_dpp v%d, v%d, v%d row_ror:%d row_mask:0xf bank_mask:0xf" % (S + n, S + n, S + n, r))
    bf16_round(a, S, 16)
    for n in range(16):
        a("v_mul_f32 v%d, 0x3db504f3, v%d" % (S + n, S + n))
    bf16_round(a, S, 16)
    for h in range(2):
        a("v_max3_f32 v%d, v%d, v%d, v%d" % (20 + h, S + h * 8, S + h * 8 + 1, S + h * 8 + 2))
        a("v_max3_f32 v%d, v%d, v%d, v%d" % (20 + h, 20 + h, S + h * 8 + 3, S + h * 8 + 4))
        a("v_max3_f32 v%d, v%d, v%d, v%d" % (20 + h, 20 + h, S + h * 8 + 5, S + h * 8 + 6))
        a("v_max_f32 v%d, v%d, v%d" % (20 + h, 20 + h, S + h * 8 + 7))
    for h in range(2):
        for i in range(8):
            a("v_sub_f32 v%d, v%d, v%d" % (S + h * 8 + i, S + h * 8 + i, 20 + h))
            a("v_mul_f32 v%d, 0x3fb8aa3b, v%d" % (S + h * 8 + i, S + h * 8 + i))
            a("v_exp_f32 v%d, v%d" % (S + h * 8 + i, S + h * 8 + i))
    a("s_nop 0")
    for h in range(2):
        a("v_add_f32 v%d, v%d, v%d" % (22 + h, S + h * 8, S + h * 8 + 1))
        for i in range(2, 8):
            a("v_add_f32 v%d, v%d, v%d" % (22 + h, 22 + h, S + h * 8 + i))
    O = 120
    for n in range(16):
        a("v_mov_b32 v%d, 0" % (O + n))
    for i in range(8):
        a("s_waitcnt vmcnt(%d)" % (7 - i))
        for j in range(4):
            w = VB + 4 * i + j
            a("v_lshlrev_b32 v140, 16, v%d" % w)
            a("v_and_b32 v141, 0xffff0000, v%d" % w)
            for h in range(2):
                a("v_fmac_f32 v%d, v%d, v140" % (O + h * 8 + 2 * j, S + h * 8 + i))
                a("v_fmac_f32 v%d, v%d, v141" % (O + h * 8 + 2 * j + 1, S + h * 8 + i))
    a("""
    v_lshrrev_b32 v5, 4, v0
    v_lshlrev_b32 v6, 9, v5
    v_lshl_add_u32 v6, v3, 5, v6
    ds_write_b128 v6, v[120:123]
    ds_write_b128 v6, v[124:127] offset:16
    ds_write_b128 v6, v[128:131] offset:16384
    ds_write_b128 v6, v[132:135] offset:16400
    v_lshlrev_b32 v7, 3, v5
    v_mov_b32 v24, v20
    v_mov_b32 v25, v22
    v_mov_b32 v26, v21
    v_mov_b32 v27, v23
    ds_write_b64 v7, v[24:25] offset:32768
    ds_write_b64 v7, v[26:27] offset:33024
    s_waitcnt lgkmcnt(0)
    s_barrier
    v_cmp_gt_u32 vcc, 256, v0
    s_and_saveexec_b64 s[16:17], vcc
    s_cbranch_execz K2_END
    v_lshrrev_b32 v5, 7, v0
    v_and_b32 v6, 127, v0
    v_lshlrev_b32 v7, 8, v5
    v_lshlrev_b32 v8, 14, v5
    v_lshl_add_u32 v8, v6, 2, v8
    """)
    for r in range(32):
        a("ds_read_b64 v[%d:%d], v7 offset:%d" % (32 + 2 * r, 33 + 2 * r, 32768 + r * 8))
        a("ds_read_b32 v%d, v8 offset:%d" % (100 + r, r * 512))
    a("s_waitcnt lgkmcnt(0)")
    a("v_max_f32 v20, v32, v34")
    for r in range(2, 32):
        a("v_max_f32 v20, v20, v%d" % (32 + 2 * r))
    for r in range(32):
        a("v_sub_f32 v%d, v%d, v20" % (32 + 2 * r, 32 + 2 * r))
        a("v_mul_f32 v%d, 0x3fb8aa3b, v%d" % (32 + 2 * r, 32 + 2 * r))
        a("v_exp_f32 v%d, v%d" % (32 + 2 * r, 32 + 2 * r))
    a("s_nop 0")
    a("v_mul_f32 v21, v32, v33")
    a("v_mul_f32 v22, v32, v100")
    for r in range(1, 32):
        a("v_fmac_f32 v21, v%d, v%d" % (32 + 2 * r, 33 + 2 * r))
        a("v_fmac_f32 v22, v%d, v%d" % (32 + 2 * r, 100 + r))
    a("""
    s_lshl_b32 s14, s10, 1
    v_add_u32 v9, s14, v5
    v_lshl_add_u32 v9, v9, 4, s11
    v_lshlrev_b32 v10, 9, v9
    v_lshl_add_u32 v10, v6, 2, v10
    v_add_u32 v10, %d, v10
    global_store_dword v10, v22, s[8:9]
    v_lshlrev_b32 v11, 3, v9
    v_add_u32 v11, %d, v11
    v_cmp_eq_u32 vcc, 0, v6
    s_and_saveexec_b64 s[16:17], vcc
    global_store_dwordx2 v11, v[20:21], s[8:9]
    """ % (WS_OP, WS_ML))
    a.label("K2_END")
    a("s_endpgm")
    return name, 160


def rowgemv(a, lds_vec_off, lds_red_off, acc_off, sbase_ws, tagl):
    a("v_lshlrev_b32 v10, 2, v1")
    a("ds_read_b32 v11, v10 offset:%d" % lds_vec_off)
    a("ds_read_b32 v12, v10 offset:%d" % (lds_vec_off + 32))
    a("s_waitcnt vmcnt(0) lgkmcnt(0)")
    for j in range(8):
        w = 32 + j
        a("v_lshlrev_b32 v50, 16, v%d" % w)
        a("v_and_b32 v51, 0xffff0000, v%d" % w)
        if j < 4:
            a("v_mul_f32 v%d, v11, v50" % (40 + 2 * j))
            a("v_mul_f32 v%d, v11, v51" % (41 + 2 * j))
        else:
            a("v_fmac_f32 v%d, v12, v50" % (40 + 2 * (j - 4)))
            a("v_fmac_f32 v%d, v12, v51" % (41 + 2 * (j - 4)))
    a("""
    v_mul_u32_u24 v13, 2304, v1
    v_lshl_add_u32 v13, v2, 5, v13
    ds_write_b128 v13, v[40:43] offset:%d
    ds_write_b128 v13, v[44:47] offset:%d
    s_waitcnt lgkmcnt(0)
    s_barrier
    v_lshlrev_b32 v14, 2, v0
    """ % (lds_red_off, lds_red_off + 16))
    for r in range(8):
        a("ds_read_b32 v%d, v14 offset:%d" % (40 + r, lds_red_off + r * 2304))
    a("s_waitcnt lgkmcnt(0)")
    for r in range(1, 8):
        a("v_add_f32 v40, v40, v%d" % (40 + r))
    a("""
    s_mul_i32 s21, s20, 2304
    s_add_u32 s21, s21, %d
    v_add_u32 v14, s21, v14
    global_atomic_add_f32 v14, v40, s[%d:%d]
    """ % (acc_off, sbase_ws, sbase_ws + 1))


def gen_k3(a):
    name = "k3_wo_kernel"
    kernel_begin(a, name)
    a("""
    s_cmp_ge_u32 s2, 256
    s_cbranch_scc1 K3_END
    s_load_dwordx2 s[4:5], s[0:1], 32
    s_load_dwordx2 s[8:9], s[0:1], 96
    v_mul_u32_u24 v1, 911, v0
    v_lshrrev_b32 v1, 16, v1
    v_mul_u32_u24 v2, 72, v1
    v_sub_u32 v2, v0, v2
    s_mul_i32 s10, s2, 18432
    v_lshlrev_b32 v3, 4, v0
    v_add_u32 v3, s10, v3
    s_lshr_b32 s11, s2, 3
    s_and_b32 s12, s2, 7
    s_and_b32 s20, s2, 15
    s_waitcnt lgkmcnt(0)
    global_load_dwordx4 v[32:35], v3, s[4:5] nt
    v_add_u32 v3, 9216, v3
    global_load_dwordx4 v[36:39], v3, s[4:5] nt
    """)
    a("""
    v_and_b32 v4, 15, v0
    v_bfe_u32 v5, v0, 4, 2
    s_lshl_b32 s13, s11, 13
    s_lshl_b32 s14, s12, 6
    s_add_u32 s13, s13, s14
    s_add_u32 s13, s13, %d
    v_lshlrev_b32 v6, 11, v5
    v_lshl_add_u32 v6, v4, 2, v6
    v_add_u32 v6, s13, v6
    s_lshl_b32 s15, s11, 7
    s_add_u32 s15, s15, %d
    v_lshlrev_b32 v7, 5, v5
    v_add_u32 v7, s15, v7
    """ % (WS_OP, WS_ML))
    for j in range(4):
        a("global_load_dword v%d, v6, s[8:9] offset:%d" % (60 + j, j * 512))
    a("global_load_dwordx4 v[64:67], v7, s[8:9]")
    a("global_load_dwordx4 v[68:71], v7, s[8:9] offset:16")
    a("""
    v_and_b32 v8, 63, v0
    v_xor_b32 v9, 16, v8
    v_lshlrev_b32 v9, 2, v9
    v_xor_b32 v15, 32, v8
    v_lshlrev_b32 v15, 2, v15
    s_waitcnt vmcnt(0)
    v_max_f32 v72, v64, v66
    v_max3_f32 v72, v72, v68, v70
    ds_bpermute_b32 v73, v9, v72
    s_waitcnt lgkmcnt(0)
    v_max_f32 v72, v72, v73
    ds_bpermute_b32 v73, v15, v72
    s_waitcnt lgkmcnt(0)
    v_max_f32 v72, v72, v73
    """)
    for j in range(4):
        m = 64 + 2 * j
        a("v_sub_f32 v%d, v%d, v72" % (m, m))
        a("v_mul_f32 v%d, 0x3fb8aa3b, v%d" % (m, m))
        a("v_exp_f32 v%d, v%d" % (m, m))
    a("s_nop 0")
    a("v_mul_f32 v74, v64, v65")
    a("v_mul_f32 v75, v64, v60")
    for j in range(1, 4):
        a("v_fmac_f32 v74, v%d, v%d" % (64 + 2 * j, 65 + 2 * j))
        a("v_fmac_f32 v75, v%d, v%d" % (64 + 2 * j, 60 + j))
    a("""
    ds_bpermute_b32 v76, v9, v74
    ds_bpermute_b32 v77, v9, v75
    s_waitcnt lgkmcnt(0)
    v_add_f32 v74, v74, v76
    v_add_f32 v75, v75, v77
    ds_bpermute_b32 v76, v15, v74
    ds_bpermute_b32 v77, v15, v75
    s_waitcnt lgkmcnt(0)
    v_add_f32 v74, v74, v76
    v_add_f32 v75, v75, v77
    v_rcp_f32 v76, v74
    s_nop 0
    v_fma_f32 v77, -v74, v76, 1.0
    v_fmac_f32 v76, v77, v76
    v_mul_f32 v75, v75, v76
    """)
    bf16_round(a, 75)
    a("""
    v_lshlrev_b32 v16, 2, v4
    ds_write_b32 v16, v75
    s_waitcnt lgkmcnt(0)
    s_barrier
    """)
    rowgemv(a, 0, 64, WS_A1, 8, "K3")
    a.label("K3_END")
    a("s_endpgm")
    return name, 96


def load_h(a, vh, vtmp, sx, sws, wait=0, part=0):
    if part != 2:
        load_h_issue(a, vtmp, sx, sws)
    if part != 1:
        load_h_finish(a, vh, vtmp, wait)


def load_h_issue(a, vtmp, sx, sws):
    a("v_lshlrev_b32 v14, 2, v0")
    a("v_add_u32 v15, %d, v14" % WS_A1)
    for r in range(16):
        a("global_load_dword v%d, v15, s[%d:%d] offset:%d" % (vtmp + r, sws, sws + 1, 0))
        if r < 15:
            a("v_add_u32 v15, 2304, v15")
    a("v_lshlrev_b32 v16, 1, v0")
    a("global_load_ushort v%d, v16, s[%d:%d]" % (vtmp + 16, sx, sx + 1))


def load_h_finish(a, vh, vtmp, wait):
    a("s_waitcnt vmcnt(%d)" % wait)
    for r in range(1, 16):
        a("v_add_f32 v%d, v%d, v%d" % (vtmp, vtmp, vtmp + r))
    bf16_round(a, vtmp)
    a("v_lshlrev_b32 v%d, 16, v%d" % (vtmp + 16, vtmp + 16))
    a("v_add_f32 v%d, v%d, v%d" % (vh, vtmp, vtmp + 16))
    bf16_round(a, vh)


def gen_k4(a):
    name = "k4_mlp_kernel"
    kernel_begin(a, name)
    stamp(a, 0)
    a("""
    s_cmp_ge_u32 s2, 144
    s_cbranch_scc1 K4_END
    s_load_dwordx2 s[4:5], s[0:1], 0
    s_load_dwordx2 s[6:7], s[0:1], 48
    s_load_dwordx2 s[8:9], s[0:1], 96
    s_load_dwordx2 s[22:23], s[0:1], 56
    s_load_dwordx2 s[24:25], s[0:1], 64
    v_mul_u32_u24 v1, 911, v0
    v_lshrrev_b32 v1, 16, v1
    v_mul_u32_u24 v2, 72, v1
    v_sub_u32 v2, v0, v2
    s_and_b32 s20, s2, 15
    s_lshl_b32 s10, s2, 6
    v_lshrrev_b32 v3, 2, v0
    v_and_b32 v4, 3, v0
    v_mul_u32_u24 v5, 9216, v3
    v_lshl_add_u32 v5, v4, 4, v5
    v_add_u32 v5, s10, v5
    s_mul_i32 s11, s2, 36864
    v_lshlrev_b32 v6, 4, v0
    v_add_u32 v6, s11, v6
    s_waitcnt lgkmcnt(0)
    """)
    load_h(a, 60, 61, 4, 8, part=1)
    for i in range(4):
        a("global_load_dwordx4 v[%d:%d], v5, s[6:7] nt" % (100 + 4 * i, 103 + 4 * i))
        if i < 3:
            a("v_add_u32 v5, %d, v5" % (144 * 9216))
    for i in range(4):
        a("global_load_dwordx4 v[%d:%d], v6, s[24:25] nt" % (132 + 4 * i, 135 + 4 * i))
        if i < 3:
            a("v_add_u32 v6, 9216, v6")
    a("""
    v_and_b32 v26, 31, v0
    v_lshlrev_b32 v26, 1, v26
    v_add_u32 v26, s10, v26
    global_load_ushort v99, v26, s[22:23]
    """)
    stamp(a, 1)
    load_h(a, 60, 61, 4, 8, wait=9, part=2)
    stamp(a, 2)
    a("""
    ds_write_b32 v14, v60
    s_waitcnt lgkmcnt(0)
    s_barrier
    v_and_b32 v17, 63, v0
    v_lshlrev_b32 v17, 2, v17
    """)
    for i in range(9):
        a("ds_read_b32 v%d, v17 offset:%d" % (60 + i, i * 256))
    a("s_waitcnt lgkmcnt(0)")
    stamp(a, 3)
    layernorm9(a, 60, 70, 26)
    stamp(a, 4)
    a("s_barrier")
    for i in range(9):
        a("ds_write_b32 v17, v%d offset:%d" % (60 + i, i * 256))
    a("s_waitcnt lgkmcnt(0)")
    a("s_barrier")
    a("v_lshlrev_b32 v18, 2, v3")
    for i in range(4):
        a("ds_read_b32 v%d, v18 offset:%d" % (60 + i, i * 576))
    for j in range(8):
        a("v_mov_b32 v%d, 0" % (40 + j))
    a("s_waitcnt lgkmcnt(0)")
    for i in range(4):
        a("s_waitcnt vmcnt(%d)" % (7 - i))
        for j in range(4):
            w = 100 + 4 * i + j
            a("v_lshlrev_b32 v50, 16, v%d" % w)
            a("v_and_b32 v51, 0xffff0000, v%d" % w)
            a("v_fmac_f32 v%d, v%d, v50" % (40 + 2 * j, 60 + i))
            a("v_fmac_f32 v%d, v%d, v51" % (41 + 2 * j, 60 + i))
    stamp(a, 5)
    for rr in (8, 4):
        a("s_nop 1")
        for n in range(8):
            a("v_add_f32_dpp v%d, v%d, v%d row_ror:%d row_mask:0xf bank_mask:0xf" % (40 + n, 40 + n, 40 + n, rr))
    a("""
    v_and_b32 v21, 63, v0
    v_xor_b32 v22, 16, v21
    v_lshlrev_b32 v22, 2, v22
    v_xor_b32 v23, 32, v21
    v_lshlrev_b32 v23, 2, v23
    """)
    for addr in (22, 23):
        for n in range(8):
            a("ds_bpermute_b32 v%d, v%d, v%d" % (50 + n, addr, 40 + n))
        a("s_waitcnt lgkmcnt(0)")
        for n in range(8):
            a("v_add_f32 v%d, v%d, v%d" % (40 + n, 40 + n, 50 + n))
    a("""
    v_lshrrev_b32 v24, 6, v0
    v_lshlrev_b32 v24, 8, v24
    v_lshl_add_u32 v24, v4, 5, v24
    v_cmp_gt_u32 vcc, 4, v21
    s_and_saveexec_b64 s[16:17], vcc
    ds_write_b128 v24, v[40:43] offset:2304
    ds_write_b128 v24, v[44:47] offset:2320
    s_mov_b64 exec, s[16:17]
    s_waitcnt lgkmcnt(0)
    s_barrier
    v_cmp_gt_u32 vcc, 32, v0
    s_and_saveexec_b64 s[16:17], vcc
    v_lshlrev_b32 v25, 2, v0
    """)
    for w in range(9):
        a("ds_read_b32 v%d, v25 offset:%d" % (40 + w, 2304 + w * 256))
    a("s_waitcnt lgkmcnt(0)")
    for w in range(1, 9):
        a("v_add_f32 v40, v40, v%d" % (40 + w))
    bf16_round(a, 40)
    a("v_lshlrev_b32 v99, 16, v99")
    a("v_add_f32 v40, v40, v99")
    bf16_round(a, 40)
    a("v_max_f32 v40, 0, v40")
    a("v_mul_f32 v40, v40, v40")
    bf16_round(a, 40)
    a("""
    ds_write_b32 v25, v40 offset:4608
    s_mov_b64 exec, s[16:17]
    s_waitcnt lgkmcnt(0)
    s_barrier
    v_lshlrev_b32 v10, 2, v1
    """)
    for i in range(4):
        a("ds_read_b32 v%d, v10 offset:%d" % (60 + i, 4608 + 32 * i))
    for j in range(8):
        a("v_mov_b32 v%d, 0" % (40 + j))
    stamp(a, 6)
    a("s_waitcnt vmcnt(0) lgkmcnt(0)")
    stamp(a, 7)
    for i in range(4):
        for j in range(4):
            w = 132 + 4 * i + j
            a("v_lshlrev_b32 v50, 16, v%d" % w)
            a("v_and_b32 v51, 0xffff0000, v%d" % w)
            a("v_fmac_f32 v%d, v%d, v50" % (40 + 2 * j, 60 + i))
            a("v_fmac_f32 v%d, v%d, v51" % (41 + 2 * j, 60 + i))
    a("""
    v_mul_u32_u24 v13, 2304, v1
    v_lshl_add_u32 v13, v2, 5, v13
    ds_write_b128 v13, v[40:43] offset:4864
    ds_write_b128 v13, v[44:47] offset:4880
    s_waitcnt lgkmcnt(0)
    s_barrier
    v_lshlrev_b32 v14, 2, v0
    """)
    for r in range(8):
        a("ds_read_b32 v%d, v14 offset:%d" % (40 + r, 4864 + r * 2304))
    a("s_waitcnt lgkmcnt(0)")
    for r in range(1, 8):
        a("v_add_f32 v40, v40, v%d" % (40 + r))
    a("""
    s_mul_i32 s21, s20, 2304
    s_add_u32 s21, s21, %d
    v_add_u32 v14, s21, v14
    global_atomic_add_f32 v14, v40, s[8:9]
    """ % WS_A2)
    stamp(a, 8)
    a("s_waitcnt vmcnt(0)")
    stamp(a, 9)
    stamp_flush(a, 10, "K4_SF")
    a.label("K4_END")
    a("s_endpgm")
    return name, 168


def gen_k5(a):
    name = "k5_final_kernel"
    kernel_begin(a, name)
    a("""
    s_cmp_ge_u32 s2, 1
    s_cbranch_scc1 K5_END
    s_load_dwordx2 s[4:5], s[0:1], 0
    s_load_dwordx2 s[8:9], s[0:1], 96
    s_load_dwordx2 s[10:11], s[0:1], 72
    s_load_dwordx2 s[12:13], s[0:1], 80
    s_waitcnt lgkmcnt(0)
    """)
    load_h(a, 60, 61, 4, 8)
    a("v_add_u32 v15, %d, v14" % WS_A2)
    for r in range(16):
        a("global_load_dword v%d, v15, s[8:9]" % (61 + r))
        if r < 15:
            a("v_add_u32 v15, 2304, v15")
    a("global_load_ushort v77, v16, s[10:11]")
    a("s_waitcnt vmcnt(0)")
    for r in range(1, 16):
        a("v_add_f32 v61, v61, v%d" % (61 + r))
    bf16_round(a, 61)
    a("v_lshlrev_b32 v77, 16, v77")
    a("v_add_f32 v61, v61, v77")
    bf16_round(a, 61)
    a("v_add_f32 v61, v61, v60")
    a("v_cvt_pk_bf16_f32 v61, v61, v61")
    a("global_store_short v16, v61, s[12:13]")
    a.label("K5_END")
    a("s_endpgm")
    return name, 96


def main():
    a = Asm()
    launches = [
        ("k1_qproj_kernel", 128, 256, 2304 + 8192),
        ("k2_attn_kernel", 256, 512, 33280),
        ("k3_wo_kernel", 256, 576, 64 + 18432),
        ("k4_mlp_kernel", 144, 576, 4864 + 18432),
        ("k5_final_kernel", 1, 576, 0),
    ]
    hdr = HEADER
    for k, g, b, l in launches:
        hdr += "; @launch kernel=%s grid=(%d,1,1) block=(%d,1,1) lds=%d\n" % (k, g, b, l)
    a.raw(hdr + '.amdgcn_target "amdgcn-amd-amdhsa--gfx950"\n.text')
    descs = []
    for g in (gen_k1, gen_k2, gen_k3, gen_k4, gen_k5):
        n, v = g(a)
        descs.append(kernel_desc(n, v))
    a.raw('.section .rodata,"a"')
    for d in descs:
        a.raw(".p2align 6")
        a.raw(d)
    open(OUT, "w").write(a.text())
    print("wrote", OUT, len(a.text()), "bytes")


if __name__ == "__main__":
    main()
```

```python
import sys

NAME = "sequential_preLN__sliding_block_cached__dense_activation_squared_relu__decode"
OUT = "cdna_kernels/%s.s" % NAME

WS_QP = 0
WS_OP = 65536
WS_ML = WS_OP + 32 * 16 * 128 * 4
WS_A1 = WS_ML + 32 * 16 * 2 * 4
WS_A2 = WS_A1 + 16 * 576 * 4
WS_END = WS_A2 + 16 * 576 * 4

HEADER = open("cdna_kernels/%s.s.ref" % NAME).read().split("; Override launch geometry")[0]


class Asm:
    def __init__(self):
        self.lines = []

    def __call__(self, s):
        for ln in s.strip("\n").split("\n"):
            self.lines.append("    " + ln.strip())

    def label(self, name):
        self.lines.append(name + ":")

    def raw(self, s):
        self.lines.append(s)

    def text(self):
        return "\n".join(self.lines) + "\n"


def kernel_begin(a, name):
    a.raw(".p2align 8")
    a.raw(".globl %s" % name)
    a.raw(".type %s,@function" % name)
    a.label(name)


def kernel_desc(name, vgpr, sgpr=102):
    acc = (vgpr + 3) // 4 * 4
    return """.amdhsa_kernel %s
  .amdhsa_next_free_vgpr %d
  .amdhsa_next_free_sgpr %d
  .amdhsa_accum_offset %d
  .amdhsa_group_segment_fixed_size 0
  .amdhsa_kernarg_size 104
  .amdhsa_user_sgpr_count 2
  .amdhsa_user_sgpr_kernarg_segment_ptr 1
  .amdhsa_system_sgpr_workgroup_id_x 1
.end_amdhsa_kernel
""" % (name, vgpr, sgpr, acc)


STAMPS = False


def stamp(a, k):
    if STAMPS:
        a("s_memrealtime s[%d:%d]" % (60 + 2 * k, 61 + 2 * k))


def stamp_flush(a, n, label):
    if not STAMPS:
        return
    a("s_waitcnt lgkmcnt(0)")
    a("s_cmp_lg_u32 s2, 0")
    a("s_cbranch_scc1 %s" % label)
    a("s_load_dwordx2 s[58:59], s[0:1], 88")
    a("s_mov_b64 exec, 1")
    a("v_mov_b32 v160, 0")
    a("s_waitcnt lgkmcnt(0)")
    for k in range(n):
        a("v_mov_b32 v161, s%d" % (60 + 2 * k))
        a("global_store_dword v160, v161, s[58:59] offset:%d" % (4 * k))
    a.label(label)


def bf16_round(a, v, n=1):
    for i in range(n):
        a("v_cvt_pk_bf16_f32 v%d, v%d, v%d" % (v + i, v + i, v + i))
    for i in range(n):
        a("v_lshlrev_b32 v%d, 16, v%d" % (v + i, v + i))


def row_allreduce(a, v, op="add"):
    for r in (8, 4, 2, 1):
        a("s_nop 1")
        a("v_%s_f32_dpp v%d, v%d, v%d row_ror:%d row_mask:0xf bank_mask:0xf" % (op, v, v, v, r))


def wave_allreduce_to_sgpr(a, v, s, op="add"):
    row_allreduce(a, v, op)
    a("s_nop 1")
    a("v_readlane_b32 s%d, v%d, 0" % (s, v))
    a("v_readlane_b32 s%d, v%d, 16" % (s + 1, v))
    a("v_readlane_b32 s%d, v%d, 32" % (s + 2, v))
    a("v_readlane_b32 s%d, v%d, 48" % (s + 3, v))
    a("s_nop 1")
    a("v_mov_b32 v%d, s%d" % (v, s))
    a("v_%s_f32 v%d, s%d, v%d" % (op, v, s + 1, v))
    a("v_%s_f32 v%d, s%d, v%d" % (op, v, s + 2, v))
    a("v_%s_f32 v%d, s%d, v%d" % (op, v, s + 3, v))


def layernorm9(a, vx, vt, s):
    a("v_add_f32 v%d, v%d, v%d" % (vt, vx, vx + 1))
    for i in range(2, 9):
        a("v_add_f32 v%d, v%d, v%d" % (vt, vt, vx + i))
    wave_allreduce_to_sgpr(a, vt, s)
    a("v_mul_f32 v%d, 0x3ae38e39, v%d" % (vt, vt))
    a("v_sub_f32 v%d, v%d, v%d" % (vt + 2, vx, vt))
    a("v_mul_f32 v%d, v%d, v%d" % (vt + 1, vt + 2, vt + 2))
    for i in range(1, 9):
        a("v_sub_f32 v%d, v%d, v%d" % (vt + 2, vx + i, vt))
        a("v_fmac_f32 v%d, v%d, v%d" % (vt + 1, vt + 2, vt + 2))
    wave_allreduce_to_sgpr(a, vt + 1, s)
    a("v_mul_f32 v%d, 0x3ae38e39, v%d" % (vt + 1, vt + 1))
    bf16_round(a, vt, 2)
    a("v_add_f32 v%d, 0x3727c5ac, v%d" % (vt + 1, vt + 1))
    bf16_round(a, vt + 1)
    a("v_sqrt_f32 v%d, v%d" % (vt + 1, vt + 1))
    a("s_nop 0")
    bf16_round(a, vt + 1)
    a("v_rcp_f32 v%d, v%d" % (vt + 2, vt + 1))
    a("s_nop 0")
    a("v_fma_f32 v%d, -v%d, v%d, 1.0" % (vt + 3, vt + 1, vt + 2))
    a("v_fmac_f32 v%d, v%d, v%d" % (vt + 2, vt + 3, vt + 2))
    for i in range(9):
        a("v_sub_f32 v%d, v%d, v%d" % (vx + i, vx + i, vt))
    bf16_round(a, vx, 9)
    for i in range(9):
        a("v_mul_f32 v%d, v%d, v%d" % (vt + 3, vx + i, vt + 2))
        a("v_fma_f32 v%d, -v%d, v%d, v%d" % (vx + i, vt + 1, vt + 3, vx + i))
        a("v_fma_f32 v%d, v%d, v%d, v%d" % (vx + i, vx + i, vt + 2, vt + 3))
    bf16_round(a, vx, 9)


def gen_k1(a):
    name = "k1_qproj_kernel"
    kernel_begin(a, name)
    a("""
    s_cmp_ge_u32 s2, 128
    s_cbranch_scc1 K1_END
    s_load_dwordx2 s[4:5], s[0:1], 0
    s_load_dwordx2 s[6:7], s[0:1], 24
    s_load_dwordx2 s[8:9], s[0:1], 96
    s_and_b32 s10, s2, 31
    s_lshr_b32 s11, s2, 5
    s_mul_i32 s12, s11, 144
    v_and_b32 v1, 15, v0
    v_lshrrev_b32 v2, 4, v0
    v_add_u32 v3, s12, v2
    v_lshlrev_b32 v4, 13, v3
    s_lshl_b32 s13, s10, 8
    v_lshlrev_b32 v5, 4, v1
    v_add3_u32 v4, v4, v5, s13
    v_and_b32 v6, 63, v0
    v_lshlrev_b32 v7, 1, v6
    s_waitcnt lgkmcnt(0)
    """)
    for i in range(9):
        a("global_load_ushort v%d, v7, s[4:5] offset:%d" % (10 + i, i * 128))
    for i in range(9):
        if i:
            a("v_add_u32 v4, 0x20000, v4")
        a("global_load_dwordx4 v[%d:%d], v4, s[6:7] nt" % (32 + 4 * i, 35 + 4 * i))
    a("s_waitcnt vmcnt(9)")
    a("""
    s_mul_i32 s14, s2, 576
    v_lshlrev_b32 v8, 2, v0
    v_add_u32 v8, s14, v8
    v_add_u32 v8, %d, v8
    v_mov_b32 v9, 0
    v_cmp_gt_u32 vcc, 144, v0
    s_and_saveexec_b64 s[16:17], vcc
    global_store_dword v8, v9, s[8:9]
    v_mov_b32 v8, %d
    global_store_dword v8, v9, s[8:9]
    s_mov_b64 exec, s[16:17]
    """ % (WS_A1, WS_END))
    for i in range(9):
        a("v_lshlrev_b32 v%d, 16, v%d" % (10 + i, 10 + i))
    layernorm9(a, 10, 20, 20)
    a("v_lshlrev_b32 v24, 2, v6")
    for i in range(9):
        a("ds_write_b32 v24, v%d offset:%d" % (10 + i, i * 256))
    a("s_waitcnt lgkmcnt(0)")
    a("s_barrier")
    a("v_lshlrev_b32 v25, 2, v3")
    for i in range(9):
        a("ds_read_b32 v%d, v25 offset:%d" % (10 + i, i * 64))
    for j in range(8):
        a("v_mov_b32 v%d, 0" % (70 + j))
    a("s_waitcnt lgkmcnt(0)")
    for i in range(9):
        a("s_waitcnt vmcnt(0)" if i == 0 else "s_nop 0")
        for j in range(4):
            w = 32 + 4 * i + j
            a("v_lshlrev_b32 v80, 16, v%d" % w)
            a("v_and_b32 v81, 0xffff0000, v%d" % w)
            a("v_fmac_f32 v%d, v%d, v80" % (70 + 2 * j, 10 + i))
            a("v_fmac_f32 v%d, v%d, v81" % (71 + 2 * j, 10 + i))
    a("""
    v_lshlrev_b32 v26, 9, v2
    v_lshl_add_u32 v26, v1, 5, v26
    ds_write_b128 v26, v[70:73] offset:2304
    ds_write_b128 v26, v[74:77] offset:2320
    s_waitcnt lgkmcnt(0)
    s_barrier
    v_cmp_gt_u32 vcc, 128, v0
    s_and_saveexec_b64 s[16:17], vcc
    s_cbranch_execz K1_END
    v_lshlrev_b32 v27, 2, v0
    """)
    for r in range(16):
        a("ds_read_b32 v%d, v27 offset:%d" % (32 + r, 2304 + r * 512))
    a("s_waitcnt lgkmcnt(0)")
    for r in range(1, 16):
        a("v_add_f32 v32, v32, v%d" % (32 + r))
    a("""
    s_lshl_b32 s14, s11, 14
    s_lshl_b32 s15, s10, 9
    s_add_u32 s14, s14, s15
    v_add_u32 v27, s14, v27
    global_store_dword v27, v32, s[8:9]
    """)
    a.label("K1_END")
    a("s_endpgm")
    return name, 96


def gen_k2(a):
    name = "k2_attn_kernel"
    kernel_begin(a, name)
    KB = 32
    VB = 64
    QT = 96
    a("""
    s_cmp_ge_u32 s2, 256
    s_cbranch_scc1 K2_END
    s_load_dwordx2 s[4:5], s[0:1], 8
    s_load_dwordx2 s[6:7], s[0:1], 16
    s_load_dwordx2 s[8:9], s[0:1], 96
    s_lshr_b32 s10, s2, 4
    s_and_b32 s11, s2, 15
    s_lshl_b32 s12, s10, 24
    s_lshl_b32 s13, s11, 16
    s_add_u32 s12, s12, s13
    s_add_u32 s12, s12, 0xf00000
    v_and_b32 v1, 63, v0
    v_lshlrev_b32 v1, 4, v1
    v_lshrrev_b32 v2, 6, v0
    v_lshl_add_u32 v1, v2, 13, v1
    v_add_u32 v1, s12, v1
    v_add_u32 v2, 0x1000, v1
    v_and_b32 v3, 15, v0
    v_lshlrev_b32 v4, 5, v3
    s_lshl_b32 s14, s10, 10
    v_add_u32 v4, s14, v4
    s_waitcnt lgkmcnt(0)
    """)
    for ks in range(4):
        for h in range(2):
            for half in range(2):
                idx = (ks * 2 + h) * 2 + half
                a("global_load_dwordx4 v[%d:%d], v4, s[8:9] offset:%d" %
                  (QT + 4 * idx, QT + 4 * idx + 3, h * 512 + half * 16 + (ks * 16384 if ks == 0 else 0)))
            if False:
                pass
        if ks < 3:
            a("v_add_u32 v4, 0x4000, v4")
    for i in range(8):
        a("global_load_dwordx4 v[%d:%d], v%d, s[4:5] offset:%d nt" % (KB + 4 * i, KB + 4 * i + 3, 1 if i < 4 else 2, (i % 4) * 1024))
    for i in range(8):
        a("global_load_dwordx4 v[%d:%d], v%d, s[6:7] offset:%d nt" % (VB + 4 * i, VB + 4 * i + 3, 1 if i < 4 else 2, (i % 4) * 1024))
    a("s_waitcnt vmcnt(16)")
    for h in range(2):
        for half in range(2):
            base = QT + 4 * (h * 2 + half)
            for ks in range(1, 4):
                o = QT + 4 * ((ks * 2 + h) * 2 + half)
                for j in range(4):
                    a("v_add_f32 v%d, v%d, v%d" % (base + j, base + j, o + j))
            a("v_cvt_pk_bf16_f32 v%d, v%d, v%d" % (10 + h * 4 + half * 2, base, base + 1))
            a("v_cvt_pk_bf16_f32 v%d, v%d, v%d" % (11 + h * 4 + half * 2, base + 2, base + 3))
    S = 100
    for i in range(8):
        a("s_waitcnt vmcnt(%d)" % (15 - i))
        for h in range(2):
            a("v_mov_b32 v%d, 0" % (S + h * 8 + i))
            for j in range(4):
                a("v_dot2c_f32_bf16 v%d, v%d, v%d" % (S + h * 8 + i, KB + 4 * i + j, 10 + h * 4 + j))
    for r in (8, 4, 2, 1):
        a("s_nop 1")
        for n in range(16):
            a("v_add_f32_dpp v%d, v%d, v%d row_ror:%d row_mask:0xf bank_mask:0xf" % (S + n, S + n, S + n, r))
    bf16_round(a, S, 16)
    for n in range(16):
        a("v_mul_f32 v%d, 0x3db504f3, v%d" % (S + n, S + n))
    bf16_round(a, S, 16)
    for h in range(2):
        a("v_max3_f32 v%d, v%d, v%d, v%d" % (20 + h, S + h * 8, S + h * 8 + 1, S + h * 8 + 2))
        a("v_max3_f32 v%d, v%d, v%d, v%d" % (20 + h, 20 + h, S + h * 8 + 3, S + h * 8 + 4))
        a("v_max3_f32 v%d, v%d, v%d, v%d" % (20 + h, 20 + h, S + h * 8 + 5, S + h * 8 + 6))
        a("v_max_f32 v%d, v%d, v%d" % (20 + h, 20 + h, S + h * 8 + 7))
    for h in range(2):
        for i in range(8):
            a("v_sub_f32 v%d, v%d, v%d" % (S + h * 8 + i, S + h * 8 + i, 20 + h))
            a("v_mul_f32 v%d, 0x3fb8aa3b, v%d" % (S + h * 8 + i, S + h * 8 + i))
            a("v_exp_f32 v%d, v%d" % (S + h * 8 + i, S + h * 8 + i))
    a("s_nop 0")
    for h in range(2):
        a("v_add_f32 v%d, v%d, v%d" % (22 + h, S + h * 8, S + h * 8 + 1))
        for i in range(2, 8):
            a("v_add_f32 v%d, v%d, v%d" % (22 + h, 22 + h, S + h * 8 + i))
    O = 120
    for n in range(16):
        a("v_mov_b32 v%d, 0" % (O + n))
    for i in range(8):
        a("s_waitcnt vmcnt(%d)" % (7 - i))
        for j in range(4):
            w = VB + 4 * i + j
            a("v_lshlrev_b32 v140, 16, v%d" % w)
            a("v_and_b32 v141, 0xffff0000, v%d" % w)
            for h in range(2):
                a("v_fmac_f32 v%d, v%d, v140" % (O + h * 8 + 2 * j, S + h * 8 + i))
                a("v_fmac_f32 v%d, v%d, v141" % (O + h * 8 + 2 * j + 1, S + h * 8 + i))
    a("""
    v_lshrrev_b32 v5, 4, v0
    v_lshlrev_b32 v6, 9, v5
    v_lshl_add_u32 v6, v3, 5, v6
    ds_write_b128 v6, v[120:123]
    ds_write_b128 v6, v[124:127] offset:16
    ds_write_b128 v6, v[128:131] offset:16384
    ds_write_b128 v6, v[132:135] offset:16400
    v_lshlrev_b32 v7, 3, v5
    v_mov_b32 v24, v20
    v_mov_b32 v25, v22
    v_mov_b32 v26, v21
    v_mov_b32 v27, v23
    ds_write_b64 v7, v[24:25] offset:32768
    ds_write_b64 v7, v[26:27] offset:33024
    s_waitcnt lgkmcnt(0)
    s_barrier
    v_cmp_gt_u32 vcc, 256, v0
    s_and_saveexec_b64 s[16:17], vcc
    s_cbranch_execz K2_END
    v_lshrrev_b32 v5, 7, v0
    v_and_b32 v6, 127, v0
    v_lshlrev_b32 v7, 8, v5
    v_lshlrev_b32 v8, 14, v5
    v_lshl_add_u32 v8, v6, 2, v8
    """)
    for r in range(32):
        a("ds_read_b64 v[%d:%d], v7 offset:%d" % (32 + 2 * r, 33 + 2 * r, 32768 + r * 8))
        a("ds_read_b32 v%d, v8 offset:%d" % (100 + r, r * 512))
    a("s_waitcnt lgkmcnt(0)")
    a("v_max_f32 v20, v32, v34")
    for r in range(2, 32):
        a("v_max_f32 v20, v20, v%d" % (32 + 2 * r))
    for r in range(32):
        a("v_sub_f32 v%d, v%d, v20" % (32 + 2 * r, 32 + 2 * r))
        a("v_mul_f32 v%d, 0x3fb8aa3b, v%d" % (32 + 2 * r, 32 + 2 * r))
        a("v_exp_f32 v%d, v%d" % (32 + 2 * r, 32 + 2 * r))
    a("s_nop 0")
    a("v_mul_f32 v21, v32, v33")
    a("v_mul_f32 v22, v32, v100")
    for r in range(1, 32):
        a("v_fmac_f32 v21, v%d, v%d" % (32 + 2 * r, 33 + 2 * r))
        a("v_fmac_f32 v22, v%d, v%d" % (32 + 2 * r, 100 + r))
    a("""
    s_lshl_b32 s14, s10, 1
    v_add_u32 v9, s14, v5
    v_lshl_add_u32 v9, v9, 4, s11
    v_lshlrev_b32 v10, 9, v9
    v_lshl_add_u32 v10, v6, 2, v10
    v_add_u32 v10, %d, v10
    global_store_dword v10, v22, s[8:9]
    v_lshlrev_b32 v11, 3, v9
    v_add_u32 v11, %d, v11
    v_cmp_eq_u32 vcc, 0, v6
    s_and_saveexec_b64 s[16:17], vcc
    global_store_dwordx2 v11, v[20:21], s[8:9]
    """ % (WS_OP, WS_ML))
    a.label("K2_END")
    a("s_endpgm")
    return name, 160


def rowgemv(a, lds_vec_off, lds_red_off, acc_off, sbase_ws, tagl):
    a("v_lshlrev_b32 v10, 2, v1")
    a("ds_read_b32 v11, v10 offset:%d" % lds_vec_off)
    a("ds_read_b32 v12, v10 offset:%d" % (lds_vec_off + 32))
    a("s_waitcnt vmcnt(0) lgkmcnt(0)")
    for j in range(8):
        w = 32 + j
        a("v_lshlrev_b32 v50, 16, v%d" % w)
        a("v_and_b32 v51, 0xffff0000, v%d" % w)
        if j < 4:
            a("v_mul_f32 v%d, v11, v50" % (40 + 2 * j))
            a("v_mul_f32 v%d, v11, v51" % (41 + 2 * j))
        else:
            a("v_fmac_f32 v%d, v12, v50" % (40 + 2 * (j - 4)))
            a("v_fmac_f32 v%d, v12, v51" % (41 + 2 * (j - 4)))
    a("""
    v_mul_u32_u24 v13, 2304, v1
    v_lshl_add_u32 v13, v2, 5, v13
    ds_write_b128 v13, v[40:43] offset:%d
    ds_write_b128 v13, v[44:47] offset:%d
    s_waitcnt lgkmcnt(0)
    s_barrier
    v_lshlrev_b32 v14, 2, v0
    """ % (lds_red_off, lds_red_off + 16))
    for r in range(8):
        a("ds_read_b32 v%d, v14 offset:%d" % (40 + r, lds_red_off + r * 2304))
    a("s_waitcnt lgkmcnt(0)")
    for r in range(1, 8):
        a("v_add_f32 v40, v40, v%d" % (40 + r))
    a("""
    s_mul_i32 s21, s20, 2304
    s_add_u32 s21, s21, %d
    v_add_u32 v14, s21, v14
    global_atomic_add_f32 v14, v40, s[%d:%d]
    """ % (acc_off, sbase_ws, sbase_ws + 1))


def gen_k3(a):
    name = "k3_wo_kernel"
    kernel_begin(a, name)
    a("""
    s_cmp_ge_u32 s2, 256
    s_cbranch_scc1 K3_END
    s_load_dwordx2 s[4:5], s[0:1], 32
    s_load_dwordx2 s[8:9], s[0:1], 96
    v_mul_u32_u24 v1, 911, v0
    v_lshrrev_b32 v1, 16, v1
    v_mul_u32_u24 v2, 72, v1
    v_sub_u32 v2, v0, v2
    s_mul_i32 s10, s2, 18432
    v_lshlrev_b32 v3, 4, v0
    v_add_u32 v3, s10, v3
    s_lshr_b32 s11, s2, 3
    s_and_b32 s12, s2, 7
    s_and_b32 s20, s2, 15
    s_waitcnt lgkmcnt(0)
    global_load_dwordx4 v[32:35], v3, s[4:5] nt
    v_add_u32 v3, 9216, v3
    global_load_dwordx4 v[36:39], v3, s[4:5] nt
    """)
    a("""
    v_and_b32 v4, 15, v0
    v_bfe_u32 v5, v0, 4, 2
    s_lshl_b32 s13, s11, 13
    s_lshl_b32 s14, s12, 6
    s_add_u32 s13, s13, s14
    s_add_u32 s13, s13, %d
    v_lshlrev_b32 v6, 11, v5
    v_lshl_add_u32 v6, v4, 2, v6
    v_add_u32 v6, s13, v6
    s_lshl_b32 s15, s11, 7
    s_add_u32 s15, s15, %d
    v_lshlrev_b32 v7, 5, v5
    v_add_u32 v7, s15, v7
    """ % (WS_OP, WS_ML))
    for j in range(4):
        a("global_load_dword v%d, v6, s[8:9] offset:%d" % (60 + j, j * 512))
    a("global_load_dwordx4 v[64:67], v7, s[8:9]")
    a("global_load_dwordx4 v[68:71], v7, s[8:9] offset:16")
    a("""
    v_and_b32 v8, 63, v0
    v_xor_b32 v9, 16, v8
    v_lshlrev_b32 v9, 2, v9
    v_xor_b32 v15, 32, v8
    v_lshlrev_b32 v15, 2, v15
    s_waitcnt vmcnt(0)
    v_max_f32 v72, v64, v66
    v_max3_f32 v72, v72, v68, v70
    ds_bpermute_b32 v73, v9, v72
    s_waitcnt lgkmcnt(0)
    v_max_f32 v72, v72, v73
    ds_bpermute_b32 v73, v15, v72
    s_waitcnt lgkmcnt(0)
    v_max_f32 v72, v72, v73
    """)
    for j in range(4):
        m = 64 + 2 * j
        a("v_sub_f32 v%d, v%d, v72" % (m, m))
        a("v_mul_f32 v%d, 0x3fb8aa3b, v%d" % (m, m))
        a("v_exp_f32 v%d, v%d" % (m, m))
    a("s_nop 0")
    a("v_mul_f32 v74, v64, v65")
    a("v_mul_f32 v75, v64, v60")
    for j in range(1, 4):
        a("v_fmac_f32 v74, v%d, v%d" % (64 + 2 * j, 65 + 2 * j))
        a("v_fmac_f32 v75, v%d, v%d" % (64 + 2 * j, 60 + j))
    a("""
    ds_bpermute_b32 v76, v9, v74
    ds_bpermute_b32 v77, v9, v75
    s_waitcnt lgkmcnt(0)
    v_add_f32 v74, v74, v76
    v_add_f32 v75, v75, v77
    ds_bpermute_b32 v76, v15, v74
    ds_bpermute_b32 v77, v15, v75
    s_waitcnt lgkmcnt(0)
    v_add_f32 v74, v74, v76
    v_add_f32 v75, v75, v77
    v_rcp_f32 v76, v74
    s_nop 0
    v_fma_f32 v77, -v74, v76, 1.0
    v_fmac_f32 v76, v77, v76
    v_mul_f32 v75, v75, v76
    """)
    bf16_round(a, 75)
    a("""
    v_lshlrev_b32 v16, 2, v4
    ds_write_b32 v16, v75
    s_waitcnt lgkmcnt(0)
    s_barrier
    """)
    rowgemv(a, 0, 64, WS_A1, 8, "K3")
    a.label("K3_END")
    a("s_endpgm")
    return name, 96


def load_h(a, vh, vtmp, sx, sws, wait=0, part=0):
    if part != 2:
        load_h_issue(a, vtmp, sx, sws)
    if part != 1:
        load_h_finish(a, vh, vtmp, wait)


def load_h_issue(a, vtmp, sx, sws):
    a("v_lshlrev_b32 v14, 2, v0")
    a("v_add_u32 v15, %d, v14" % WS_A1)
    for r in range(16):
        a("global_load_dword v%d, v15, s[%d:%d] offset:%d" % (vtmp + r, sws, sws + 1, 0))
        if r < 15:
            a("v_add_u32 v15, 2304, v15")
    a("v_lshlrev_b32 v16, 1, v0")
    a("global_load_ushort v%d, v16, s[%d:%d]" % (vtmp + 16, sx, sx + 1))


def load_h_finish(a, vh, vtmp, wait):
    a("s_waitcnt vmcnt(%d)" % wait)
    for r in range(1, 16):
        a("v_add_f32 v%d, v%d, v%d" % (vtmp, vtmp, vtmp + r))
    bf16_round(a, vtmp)
    a("v_lshlrev_b32 v%d, 16, v%d" % (vtmp + 16, vtmp + 16))
    a("v_add_f32 v%d, v%d, v%d" % (vh, vtmp, vtmp + 16))
    bf16_round(a, vh)


def gen_k4(a):
    name = "k4_mlp_kernel"
    kernel_begin(a, name)
    stamp(a, 0)
    a("""
    s_cmp_ge_u32 s2, 144
    s_cbranch_scc1 K4_END
    s_load_dwordx2 s[4:5], s[0:1], 0
    s_load_dwordx2 s[6:7], s[0:1], 48
    s_load_dwordx2 s[8:9], s[0:1], 96
    s_load_dwordx2 s[22:23], s[0:1], 56
    s_load_dwordx2 s[24:25], s[0:1], 64
    s_load_dwordx2 s[34:35], s[0:1], 72
    s_load_dwordx2 s[36:37], s[0:1], 80
    v_mul_u32_u24 v1, 911, v0
    v_lshrrev_b32 v1, 16, v1
    v_mul_u32_u24 v2, 72, v1
    v_sub_u32 v2, v0, v2
    s_and_b32 s20, s2, 15
    s_lshl_b32 s10, s2, 6
    v_lshrrev_b32 v3, 2, v0
    v_and_b32 v4, 3, v0
    v_mul_u32_u24 v5, 9216, v3
    v_lshl_add_u32 v5, v4, 4, v5
    v_add_u32 v5, s10, v5
    s_mul_i32 s11, s2, 36864
    v_lshlrev_b32 v6, 4, v0
    v_add_u32 v6, s11, v6
    s_waitcnt lgkmcnt(0)
    """)
    load_h(a, 60, 61, 4, 8, part=1)
    for i in range(4):
        a("global_load_dwordx4 v[%d:%d], v5, s[6:7] nt" % (100 + 4 * i, 103 + 4 * i))
        if i < 3:
            a("v_add_u32 v5, %d, v5" % (144 * 9216))
    for i in range(4):
        a("global_load_dwordx4 v[%d:%d], v6, s[24:25] nt" % (132 + 4 * i, 135 + 4 * i))
        if i < 3:
            a("v_add_u32 v6, 9216, v6")
    a("""
    v_and_b32 v26, 31, v0
    v_lshlrev_b32 v26, 1, v26
    v_add_u32 v26, s10, v26
    global_load_ushort v99, v26, s[22:23]
    """)
    stamp(a, 1)
    load_h(a, 60, 61, 4, 8, wait=9, part=2)
    stamp(a, 2)
    a("v_mov_b32 v59, v60")
    a("""
    ds_write_b32 v14, v60
    s_waitcnt lgkmcnt(0)
    s_barrier
    v_and_b32 v17, 63, v0
    v_lshlrev_b32 v17, 2, v17
    """)
    for i in range(9):
        a("ds_read_b32 v%d, v17 offset:%d" % (60 + i, i * 256))
    a("s_waitcnt lgkmcnt(0)")
    stamp(a, 3)
    layernorm9(a, 60, 70, 26)
    stamp(a, 4)
    a("s_barrier")
    for i in range(9):
        a("ds_write_b32 v17, v%d offset:%d" % (60 + i, i * 256))
    a("s_waitcnt lgkmcnt(0)")
    a("s_barrier")
    a("v_lshlrev_b32 v18, 2, v3")
    for i in range(4):
        a("ds_read_b32 v%d, v18 offset:%d" % (60 + i, i * 576))
    for j in range(8):
        a("v_mov_b32 v%d, 0" % (40 + j))
    a("s_waitcnt lgkmcnt(0)")
    for i in range(4):
        a("s_waitcnt vmcnt(%d)" % (7 - i))
        for j in range(4):
            w = 100 + 4 * i + j
            a("v_lshlrev_b32 v50, 16, v%d" % w)
            a("v_and_b32 v51, 0xffff0000, v%d" % w)
            a("v_fmac_f32 v%d, v%d, v50" % (40 + 2 * j, 60 + i))
            a("v_fmac_f32 v%d, v%d, v51" % (41 + 2 * j, 60 + i))
    stamp(a, 5)
    for rr in (8, 4):
        a("s_nop 1")
        for n in range(8):
            a("v_add_f32_dpp v%d, v%d, v%d row_ror:%d row_mask:0xf bank_mask:0xf" % (40 + n, 40 + n, 40 + n, rr))
    a("""
    v_and_b32 v21, 63, v0
    v_xor_b32 v22, 16, v21
    v_lshlrev_b32 v22, 2, v22
    v_xor_b32 v23, 32, v21
    v_lshlrev_b32 v23, 2, v23
    """)
    for addr in (22, 23):
        for n in range(8):
            a("ds_bpermute_b32 v%d, v%d, v%d" % (50 + n, addr, 40 + n))
        a("s_waitcnt lgkmcnt(0)")
        for n in range(8):
            a("v_add_f32 v%d, v%d, v%d" % (40 + n, 40 + n, 50 + n))
    a("""
    v_lshrrev_b32 v24, 6, v0
    v_lshlrev_b32 v24, 8, v24
    v_lshl_add_u32 v24, v4, 5, v24
    v_cmp_gt_u32 vcc, 4, v21
    s_and_saveexec_b64 s[16:17], vcc
    ds_write_b128 v24, v[40:43] offset:2304
    ds_write_b128 v24, v[44:47] offset:2320
    s_mov_b64 exec, s[16:17]
    s_waitcnt lgkmcnt(0)
    s_barrier
    v_cmp_gt_u32 vcc, 32, v0
    s_and_saveexec_b64 s[16:17], vcc
    v_lshlrev_b32 v25, 2, v0
    """)
    for w in range(9):
        a("ds_read_b32 v%d, v25 offset:%d" % (40 + w, 2304 + w * 256))
    a("s_waitcnt lgkmcnt(0)")
    for w in range(1, 9):
        a("v_add_f32 v40, v40, v%d" % (40 + w))
    bf16_round(a, 40)
    a("v_lshlrev_b32 v99, 16, v99")
    a("v_add_f32 v40, v40, v99")
    bf16_round(a, 40)
    a("v_max_f32 v40, 0, v40")
    a("v_mul_f32 v40, v40, v40")
    bf16_round(a, 40)
    a("""
    ds_write_b32 v25, v40 offset:4608
    s_mov_b64 exec, s[16:17]
    s_waitcnt lgkmcnt(0)
    s_barrier
    v_lshlrev_b32 v10, 2, v1
    """)
    for i in range(4):
        a("ds_read_b32 v%d, v10 offset:%d" % (60 + i, 4608 + 32 * i))
    for j in range(8):
        a("v_mov_b32 v%d, 0" % (40 + j))
    stamp(a, 6)
    a("s_waitcnt vmcnt(0) lgkmcnt(0)")
    stamp(a, 7)
    for i in range(4):
        for j in range(4):
            w = 132 + 4 * i + j
            a("v_lshlrev_b32 v50, 16, v%d" % w)
            a("v_and_b32 v51, 0xffff0000, v%d" % w)
            a("v_fmac_f32 v%d, v%d, v50" % (40 + 2 * j, 60 + i))
            a("v_fmac_f32 v%d, v%d, v51" % (41 + 2 * j, 60 + i))
    a("""
    v_mul_u32_u24 v13, 2304, v1
    v_lshl_add_u32 v13, v2, 5, v13
    ds_write_b128 v13, v[40:43] offset:4864
    ds_write_b128 v13, v[44:47] offset:4880
    s_waitcnt lgkmcnt(0)
    s_barrier
    v_lshlrev_b32 v14, 2, v0
    """)
    for r in range(8):
        a("ds_read_b32 v%d, v14 offset:%d" % (40 + r, 4864 + r * 2304))
    a("s_waitcnt lgkmcnt(0)")
    for r in range(1, 8):
        a("v_add_f32 v40, v40, v%d" % (40 + r))
    a("""
    s_mul_i32 s21, s20, 2304
    s_add_u32 s21, s21, %d
    v_add_u32 v14, s21, v14
    global_atomic_add_f32 v14, v40, s[8:9]
    """ % WS_A2)
    stamp(a, 8)
    a("s_waitcnt vmcnt(0)")
    stamp(a, 9)
    stamp_flush(a, 10, "K4_SF")
    a("""
    s_waitcnt vmcnt(0)
    s_barrier
    v_cmp_eq_u32 vcc, 0, v0
    s_and_saveexec_b64 s[16:17], vcc
    v_mov_b32 v40, 1
    v_mov_b32 v41, %d
    global_atomic_add v42, v41, v40, s[8:9] sc0
    s_waitcnt vmcnt(0)
    v_mov_b32 v41, 0
    ds_write_b32 v41, v42
    s_mov_b64 exec, s[16:17]
    s_waitcnt lgkmcnt(0)
    s_barrier
    v_mov_b32 v41, 0
    ds_read_b32 v42, v41
    s_waitcnt lgkmcnt(0)
    v_readfirstlane_b32 s33, v42
    s_cmp_lg_u32 s33, 143
    s_cbranch_scc1 K4_END
    v_lshlrev_b32 v14, 2, v0
    v_add_u32 v15, %d, v14
    """ % (WS_END, WS_A2))
    for r in range(16):
        a("global_load_dword v%d, v15, s[8:9] sc0 sc1" % (61 + r))
        if r < 15:
            a("v_add_u32 v15, 2304, v15")
    a("v_lshlrev_b32 v16, 1, v0")
    a("global_load_ushort v77, v16, s[34:35]")
    a("s_waitcnt vmcnt(0)")
    for r in range(1, 16):
        a("v_add_f32 v61, v61, v%d" % (61 + r))
    bf16_round(a, 61)
    a("v_lshlrev_b32 v77, 16, v77")
    a("v_add_f32 v61, v61, v77")
    bf16_round(a, 61)
    a("v_add_f32 v61, v61, v59")
    a("v_cvt_pk_bf16_f32 v61, v61, v61")
    a("global_store_short v16, v61, s[36:37]")
    a.label("K4_END")
    a("s_endpgm")
    return name, 168


def gen_k5(a):
    name = "k5_final_kernel"
    kernel_begin(a, name)
    a("""
    s_cmp_ge_u32 s2, 1
    s_cbranch_scc1 K5_END
    s_load_dwordx2 s[4:5], s[0:1], 0
    s_load_dwordx2 s[8:9], s[0:1], 96
    s_load_dwordx2 s[10:11], s[0:1], 72
    s_load_dwordx2 s[12:13], s[0:1], 80
    s_waitcnt lgkmcnt(0)
    """)
    load_h(a, 60, 61, 4, 8)
    a("v_add_u32 v15, %d, v14" % WS_A2)
    for r in range(16):
        a("global_load_dword v%d, v15, s[8:9]" % (61 + r))
        if r < 15:
            a("v_add_u32 v15, 2304, v15")
    a("global_load_ushort v77, v16, s[10:11]")
    a("s_waitcnt vmcnt(0)")
    for r in range(1, 16):
        a("v_add_f32 v61, v61, v%d" % (61 + r))
    bf16_round(a, 61)
    a("v_lshlrev_b32 v77, 16, v77")
    a("v_add_f32 v61, v61, v77")
    bf16_round(a, 61)
    a("v_add_f32 v61, v61, v60")
    a("v_cvt_pk_bf16_f32 v61, v61, v61")
    a("global_store_short v16, v61, s[12:13]")
    a.label("K5_END")
    a("s_endpgm")
    return name, 96


def main():
    a = Asm()
    launches = [
        ("k1_qproj_kernel", 128, 256, 2304 + 8192),
        ("k2_attn_kernel", 256, 512, 33280),
        ("k3_wo_kernel", 256, 576, 64 + 18432),
        ("k4_mlp_kernel", 144, 576, 4864 + 18432),
    ]
    hdr = HEADER
    for k, g, b, l in launches:
        hdr += "; @launch kernel=%s grid=(%d,1,1) block=(%d,1,1) lds=%d\n" % (k, g, b, l)
    a.raw(hdr + '.amdgcn_target "amdgcn-amd-amdhsa--gfx950"\n.text')
    descs = []
    for g in (gen_k1, gen_k2, gen_k3, gen_k4):
        n, v = g(a)
        descs.append(kernel_desc(n, v))
    a.raw('.section .rodata,"a"')
    for d in descs:
        a.raw(".p2align 6")
        a.raw(d)
    open(OUT, "w").write(a.text())
    print("wrote", OUT, len(a.text()), "bytes")


if __name__ == "__main__":
    main()
```

```python
import sys

NAME = "sequential_preLN__sliding_block_cached__dense_activation_squared_relu__decode"
OUT = "cdna_kernels/%s.s" % NAME

WS_QP = 0
WS_OP = 65536
WS_ML = WS_OP + 32 * 16 * 128 * 4
WS_A1 = WS_ML + 32 * 16 * 2 * 4
WS_A2 = WS_A1 + 16 * 576 * 4
WS_END = WS_A2 + 16 * 576 * 4

HEADER = open("cdna_kernels/%s.s.ref" % NAME).read().split("; Override launch geometry")[0]


class Asm:
    def __init__(self):
        self.lines = []

    def __call__(self, s):
        for ln in s.strip("\n").split("\n"):
            self.lines.append("    " + ln.strip())

    def label(self, name):
        self.lines.append(name + ":")

    def raw(self, s):
        self.lines.append(s)

    def text(self):
        return "\n".join(self.lines) + "\n"


def kernel_begin(a, name):
    a.raw(".p2align 8")
    a.raw(".globl %s" % name)
    a.raw(".type %s,@function" % name)
    a.label(name)


def kernel_desc(name, vgpr, sgpr=102):
    acc = (vgpr + 3) // 4 * 4
    return """.amdhsa_kernel %s
  .amdhsa_next_free_vgpr %d
  .amdhsa_next_free_sgpr %d
  .amdhsa_accum_offset %d
  .amdhsa_group_segment_fixed_size 0
  .amdhsa_kernarg_size 104
  .amdhsa_user_sgpr_count 2
  .amdhsa_user_sgpr_kernarg_segment_ptr 1
  .amdhsa_system_sgpr_workgroup_id_x 1
.end_amdhsa_kernel
""" % (name, vgpr, sgpr, acc)


STAMPS = False


def stamp(a, k):
    if STAMPS:
        a("s_memrealtime s[%d:%d]" % (60 + 2 * k, 61 + 2 * k))


def stamp_flush(a, n, label):
    if not STAMPS:
        return
    a("s_waitcnt lgkmcnt(0)")
    a("s_cmp_lg_u32 s2, 0")
    a("s_cbranch_scc1 %s" % label)
    a("s_load_dwordx2 s[58:59], s[0:1], 88")
    a("s_mov_b64 exec, 1")
    a("v_mov_b32 v160, 0")
    a("s_waitcnt lgkmcnt(0)")
    for k in range(n):
        a("v_mov_b32 v161, s%d" % (60 + 2 * k))
        a("global_store_dword v160, v161, s[58:59] offset:%d" % (4 * k))
    a.label(label)


DIAG = True


def diag_start(a):
    if DIAG:
        a("s_memrealtime s[90:91]")


def diag_mid(a):
    if DIAG:
        a("s_memrealtime s[92:93]")


def diag_end(a, idx, label):
    if not DIAG:
        return
    a("s_waitcnt vmcnt(0) lgkmcnt(0)")
    a("s_memrealtime s[94:95]")
    a("s_cmp_lg_u32 s2, 0")
    a("s_cbranch_scc1 %s" % label)
    a("s_load_dwordx2 s[96:97], s[0:1], 88")
    a("s_waitcnt lgkmcnt(0)")
    a("s_sub_u32 s96, s96, %d" % (idx * 512))
    a("s_subb_u32 s97, s97, 0")
    a("s_mov_b64 exec, 1")
    a("v_mov_b32 v90, 0")
    for k, sr in enumerate((90, 92, 94)):
        a("v_mov_b32 v91, s%d" % sr)
        a("global_store_dword v90, v91, s[96:97] offset:%d" % (idx * 16 + 4 * k))
    a.label(label)


def bf16_round(a, v, n=1):
    for i in range(n):
        a("v_cvt_pk_bf16_f32 v%d, v%d, v%d" % (v + i, v + i, v + i))
    for i in range(n):
        a("v_lshlrev_b32 v%d, 16, v%d" % (v + i, v + i))


def row_allreduce(a, v, op="add"):
    for r in (8, 4, 2, 1):
        a("s_nop 1")
        a("v_%s_f32_dpp v%d, v%d, v%d row_ror:%d row_mask:0xf bank_mask:0xf" % (op, v, v, v, r))


def wave_allreduce_to_sgpr(a, v, s, op="add"):
    row_allreduce(a, v, op)
    a("s_nop 1")
    a("v_readlane_b32 s%d, v%d, 0" % (s, v))
    a("v_readlane_b32 s%d, v%d, 16" % (s + 1, v))
    a("v_readlane_b32 s%d, v%d, 32" % (s + 2, v))
    a("v_readlane_b32 s%d, v%d, 48" % (s + 3, v))
    a("s_nop 1")
    a("v_mov_b32 v%d, s%d" % (v, s))
    a("v_%s_f32 v%d, s%d, v%d" % (op, v, s + 1, v))
    a("v_%s_f32 v%d, s%d, v%d" % (op, v, s + 2, v))
    a("v_%s_f32 v%d, s%d, v%d" % (op, v, s + 3, v))


def layernorm9(a, vx, vt, s):
    a("v_add_f32 v%d, v%d, v%d" % (vt, vx, vx + 1))
    for i in range(2, 9):
        a("v_add_f32 v%d, v%d, v%d" % (vt, vt, vx + i))
    wave_allreduce_to_sgpr(a, vt, s)
    a("v_mul_f32 v%d, 0x3ae38e39, v%d" % (vt, vt))
    a("v_sub_f32 v%d, v%d, v%d" % (vt + 2, vx, vt))
    a("v_mul_f32 v%d, v%d, v%d" % (vt + 1, vt + 2, vt + 2))
    for i in range(1, 9):
        a("v_sub_f32 v%d, v%d, v%d" % (vt + 2, vx + i, vt))
        a("v_fmac_f32 v%d, v%d, v%d" % (vt + 1, vt + 2, vt + 2))
    wave_allreduce_to_sgpr(a, vt + 1, s)
    a("v_mul_f32 v%d, 0x3ae38e39, v%d" % (vt + 1, vt + 1))
    bf16_round(a, vt, 2)
    a("v_add_f32 v%d, 0x3727c5ac, v%d" % (vt + 1, vt + 1))
    bf16_round(a, vt + 1)
    a("v_sqrt_f32 v%d, v%d" % (vt + 1, vt + 1))
    a("s_nop 0")
    bf16_round(a, vt + 1)
    a("v_rcp_f32 v%d, v%d" % (vt + 2, vt + 1))
    a("s_nop 0")
    a("v_fma_f32 v%d, -v%d, v%d, 1.0" % (vt + 3, vt + 1, vt + 2))
    a("v_fmac_f32 v%d, v%d, v%d" % (vt + 2, vt + 3, vt + 2))
    for i in range(9):
        a("v_sub_f32 v%d, v%d, v%d" % (vx + i, vx + i, vt))
    bf16_round(a, vx, 9)
    for i in range(9):
        a("v_mul_f32 v%d, v%d, v%d" % (vt + 3, vx + i, vt + 2))
        a("v_fma_f32 v%d, -v%d, v%d, v%d" % (vx + i, vt + 1, vt + 3, vx + i))
        a("v_fma_f32 v%d, v%d, v%d, v%d" % (vx + i, vx + i, vt + 2, vt + 3))
    bf16_round(a, vx, 9)


def gen_k1(a):
    name = "k1_qproj_kernel"
    kernel_begin(a, name)
    diag_start(a)
    a("""
    s_cmp_ge_u32 s2, 128
    s_cbranch_scc1 K1_END
    s_load_dwordx2 s[4:5], s[0:1], 0
    s_load_dwordx2 s[6:7], s[0:1], 24
    s_load_dwordx2 s[8:9], s[0:1], 96
    s_and_b32 s10, s2, 31
    s_lshr_b32 s11, s2, 5
    s_mul_i32 s12, s11, 144
    v_and_b32 v1, 15, v0
    v_lshrrev_b32 v2, 4, v0
    v_add_u32 v3, s12, v2
    v_lshlrev_b32 v4, 13, v3
    s_lshl_b32 s13, s10, 8
    v_lshlrev_b32 v5, 4, v1
    v_add3_u32 v4, v4, v5, s13
    v_and_b32 v6, 63, v0
    v_lshlrev_b32 v7, 1, v6
    s_waitcnt lgkmcnt(0)
    """)
    for i in range(9):
        a("global_load_ushort v%d, v7, s[4:5] offset:%d" % (10 + i, i * 128))
    for i in range(9):
        if i:
            a("v_add_u32 v4, 0x20000, v4")
        a("global_load_dwordx4 v[%d:%d], v4, s[6:7] nt" % (32 + 4 * i, 35 + 4 * i))
    a("s_waitcnt vmcnt(9)")
    a("""
    s_mul_i32 s14, s2, 576
    v_lshlrev_b32 v8, 2, v0
    v_add_u32 v8, s14, v8
    v_add_u32 v8, %d, v8
    v_mov_b32 v9, 0
    v_cmp_gt_u32 vcc, 144, v0
    s_and_saveexec_b64 s[16:17], vcc
    global_store_dword v8, v9, s[8:9]
    v_mov_b32 v8, %d
    global_store_dword v8, v9, s[8:9]
    s_mov_b64 exec, s[16:17]
    """ % (WS_A1, WS_END))
    for i in range(9):
        a("v_lshlrev_b32 v%d, 16, v%d" % (10 + i, 10 + i))
    layernorm9(a, 10, 20, 20)
    a("v_lshlrev_b32 v24, 2, v6")
    for i in range(9):
        a("ds_write_b32 v24, v%d offset:%d" % (10 + i, i * 256))
    a("s_waitcnt lgkmcnt(0)")
    a("s_barrier")
    a("v_lshlrev_b32 v25, 2, v3")
    for i in range(9):
        a("ds_read_b32 v%d, v25 offset:%d" % (10 + i, i * 64))
    for j in range(8):
        a("v_mov_b32 v%d, 0" % (70 + j))
    a("s_waitcnt lgkmcnt(0)")
    for i in range(9):
        a("s_waitcnt vmcnt(0)" if i == 0 else "s_nop 0")
        for j in range(4):
            w = 32 + 4 * i + j
            a("v_lshlrev_b32 v80, 16, v%d" % w)
            a("v_and_b32 v81, 0xffff0000, v%d" % w)
            a("v_fmac_f32 v%d, v%d, v80" % (70 + 2 * j, 10 + i))
            a("v_fmac_f32 v%d, v%d, v81" % (71 + 2 * j, 10 + i))
    a("""
    v_lshlrev_b32 v26, 9, v2
    v_lshl_add_u32 v26, v1, 5, v26
    ds_write_b128 v26, v[70:73] offset:2304
    ds_write_b128 v26, v[74:77] offset:2320
    s_waitcnt lgkmcnt(0)
    s_barrier
    v_cmp_gt_u32 vcc, 128, v0
    s_and_saveexec_b64 s[16:17], vcc
    s_cbranch_execz K1_END
    v_lshlrev_b32 v27, 2, v0
    """)
    for r in range(16):
        a("ds_read_b32 v%d, v27 offset:%d" % (32 + r, 2304 + r * 512))
    a("s_waitcnt lgkmcnt(0)")
    for r in range(1, 16):
        a("v_add_f32 v32, v32, v%d" % (32 + r))
    a("""
    s_lshl_b32 s14, s11, 14
    s_lshl_b32 s15, s10, 9
    s_add_u32 s14, s14, s15
    v_add_u32 v27, s14, v27
    global_store_dword v27, v32, s[8:9]
    """)
    diag_end(a, 0, "DG0")
    a.label("K1_END")
    a("s_endpgm")
    return name, 96


def gen_k2(a):
    name = "k2_attn_kernel"
    kernel_begin(a, name)
    diag_start(a)
    KB = 32
    VB = 64
    QT = 96
    a("""
    s_cmp_ge_u32 s2, 256
    s_cbranch_scc1 K2_END
    s_load_dwordx2 s[4:5], s[0:1], 8
    s_load_dwordx2 s[6:7], s[0:1], 16
    s_load_dwordx2 s[8:9], s[0:1], 96
    s_lshr_b32 s10, s2, 4
    s_and_b32 s11, s2, 15
    s_lshl_b32 s12, s10, 24
    s_lshl_b32 s13, s11, 16
    s_add_u32 s12, s12, s13
    s_add_u32 s12, s12, 0xf00000
    v_and_b32 v1, 63, v0
    v_lshlrev_b32 v1, 4, v1
    v_lshrrev_b32 v2, 6, v0
    v_lshl_add_u32 v1, v2, 13, v1
    v_add_u32 v1, s12, v1
    v_add_u32 v2, 0x1000, v1
    v_and_b32 v3, 15, v0
    v_lshlrev_b32 v4, 5, v3
    s_lshl_b32 s14, s10, 10
    v_add_u32 v4, s14, v4
    s_waitcnt lgkmcnt(0)
    """)
    for ks in range(4):
        for h in range(2):
            for half in range(2):
                idx = (ks * 2 + h) * 2 + half
                a("global_load_dwordx4 v[%d:%d], v4, s[8:9] offset:%d" %
                  (QT + 4 * idx, QT + 4 * idx + 3, h * 512 + half * 16 + (ks * 16384 if ks == 0 else 0)))
            if False:
                pass
        if ks < 3:
            a("v_add_u32 v4, 0x4000, v4")
    for i in range(8):
        a("global_load_dwordx4 v[%d:%d], v%d, s[4:5] offset:%d nt" % (KB + 4 * i, KB + 4 * i + 3, 1 if i < 4 else 2, (i % 4) * 1024))
    for i in range(8):
        a("global_load_dwordx4 v[%d:%d], v%d, s[6:7] offset:%d nt" % (VB + 4 * i, VB + 4 * i + 3, 1 if i < 4 else 2, (i % 4) * 1024))
    a("s_waitcnt vmcnt(16)")
    for h in range(2):
        for half in range(2):
            base = QT + 4 * (h * 2 + half)
            for ks in range(1, 4):
                o = QT + 4 * ((ks * 2 + h) * 2 + half)
                for j in range(4):
                    a("v_add_f32 v%d, v%d, v%d" % (base + j, base + j, o + j))
            a("v_cvt_pk_bf16_f32 v%d, v%d, v%d" % (10 + h * 4 + half * 2, base, base + 1))
            a("v_cvt_pk_bf16_f32 v%d, v%d, v%d" % (11 + h * 4 + half * 2, base + 2, base + 3))
    S = 100
    for i in range(8):
        a("s_waitcnt vmcnt(%d)" % (15 - i))
        for h in range(2):
            a("v_mov_b32 v%d, 0" % (S + h * 8 + i))
            for j in range(4):
                a("v_dot2c_f32_bf16 v%d, v%d, v%d" % (S + h * 8 + i, KB + 4 * i + j, 10 + h * 4 + j))
    for r in (8, 4, 2, 1):
        a("s_nop 1")
        for n in range(16):
            a("v_add_f32_dpp v%d, v%d, v%d row_ror:%d row_mask:0xf bank_mask:0xf" % (S + n, S + n, S + n, r))
    bf16_round(a, S, 16)
    for n in range(16):
        a("v_mul_f32 v%d, 0x3db504f3, v%d" % (S + n, S + n))
    bf16_round(a, S, 16)
    for h in range(2):
        a("v_max3_f32 v%d, v%d, v%d, v%d" % (20 + h, S + h * 8, S + h * 8 + 1, S + h * 8 + 2))
        a("v_max3_f32 v%d, v%d, v%d, v%d" % (20 + h, 20 + h, S + h * 8 + 3, S + h * 8 + 4))
        a("v_max3_f32 v%d, v%d, v%d, v%d" % (20 + h, 20 + h, S + h * 8 + 5, S + h * 8 + 6))
        a("v_max_f32 v%d, v%d, v%d" % (20 + h, 20 + h, S + h * 8 + 7))
    for h in range(2):
        for i in range(8):
            a("v_sub_f32 v%d, v%d, v%d" % (S + h * 8 + i, S + h * 8 + i, 20 + h))
            a("v_mul_f32 v%d, 0x3fb8aa3b, v%d" % (S + h * 8 + i, S + h * 8 + i))
            a("v_exp_f32 v%d, v%d" % (S + h * 8 + i, S + h * 8 + i))
    a("s_nop 0")
    for h in range(2):
        a("v_add_f32 v%d, v%d, v%d" % (22 + h, S + h * 8, S + h * 8 + 1))
        for i in range(2, 8):
            a("v_add_f32 v%d, v%d, v%d" % (22 + h, 22 + h, S + h * 8 + i))
    O = 120
    for n in range(16):
        a("v_mov_b32 v%d, 0" % (O + n))
    for i in range(8):
        a("s_waitcnt vmcnt(%d)" % (7 - i))
        for j in range(4):
            w = VB + 4 * i + j
            a("v_lshlrev_b32 v140, 16, v%d" % w)
            a("v_and_b32 v141, 0xffff0000, v%d" % w)
            for h in range(2):
                a("v_fmac_f32 v%d, v%d, v140" % (O + h * 8 + 2 * j, S + h * 8 + i))
                a("v_fmac_f32 v%d, v%d, v141" % (O + h * 8 + 2 * j + 1, S + h * 8 + i))
    a("""
    v_lshrrev_b32 v5, 4, v0
    v_lshlrev_b32 v6, 9, v5
    v_lshl_add_u32 v6, v3, 5, v6
    ds_write_b128 v6, v[120:123]
    ds_write_b128 v6, v[124:127] offset:16
    ds_write_b128 v6, v[128:131] offset:16384
    ds_write_b128 v6, v[132:135] offset:16400
    v_lshlrev_b32 v7, 3, v5
    v_mov_b32 v24, v20
    v_mov_b32 v25, v22
    v_mov_b32 v26, v21
    v_mov_b32 v27, v23
    ds_write_b64 v7, v[24:25] offset:32768
    ds_write_b64 v7, v[26:27] offset:33024
    s_waitcnt lgkmcnt(0)
    s_barrier
    v_cmp_gt_u32 vcc, 256, v0
    s_and_saveexec_b64 s[16:17], vcc
    s_cbranch_execz K2_END
    v_lshrrev_b32 v5, 7, v0
    v_and_b32 v6, 127, v0
    v_lshlrev_b32 v7, 8, v5
    v_lshlrev_b32 v8, 14, v5
    v_lshl_add_u32 v8, v6, 2, v8
    """)
    for r in range(32):
        a("ds_read_b64 v[%d:%d], v7 offset:%d" % (32 + 2 * r, 33 + 2 * r, 32768 + r * 8))
        a("ds_read_b32 v%d, v8 offset:%d" % (100 + r, r * 512))
    a("s_waitcnt lgkmcnt(0)")
    a("v_max_f32 v20, v32, v34")
    for r in range(2, 32):
        a("v_max_f32 v20, v20, v%d" % (32 + 2 * r))
    for r in range(32):
        a("v_sub_f32 v%d, v%d, v20" % (32 + 2 * r, 32 + 2 * r))
        a("v_mul_f32 v%d, 0x3fb8aa3b, v%d" % (32 + 2 * r, 32 + 2 * r))
        a("v_exp_f32 v%d, v%d" % (32 + 2 * r, 32 + 2 * r))
    a("s_nop 0")
    a("v_mul_f32 v21, v32, v33")
    a("v_mul_f32 v22, v32, v100")
    for r in range(1, 32):
        a("v_fmac_f32 v21, v%d, v%d" % (32 + 2 * r, 33 + 2 * r))
        a("v_fmac_f32 v22, v%d, v%d" % (32 + 2 * r, 100 + r))
    a("""
    s_lshl_b32 s14, s10, 1
    v_add_u32 v9, s14, v5
    v_lshl_add_u32 v9, v9, 4, s11
    v_lshlrev_b32 v10, 9, v9
    v_lshl_add_u32 v10, v6, 2, v10
    v_add_u32 v10, %d, v10
    global_store_dword v10, v22, s[8:9]
    v_lshlrev_b32 v11, 3, v9
    v_add_u32 v11, %d, v11
    v_cmp_eq_u32 vcc, 0, v6
    s_and_saveexec_b64 s[16:17], vcc
    global_store_dwordx2 v11, v[20:21], s[8:9]
    """ % (WS_OP, WS_ML))
    diag_end(a, 1, "DG1")
    a.label("K2_END")
    a("s_endpgm")
    return name, 160


def rowgemv(a, lds_vec_off, lds_red_off, acc_off, sbase_ws, tagl):
    a("v_lshlrev_b32 v10, 2, v1")
    a("ds_read_b32 v11, v10 offset:%d" % lds_vec_off)
    a("ds_read_b32 v12, v10 offset:%d" % (lds_vec_off + 32))
    a("s_waitcnt vmcnt(0) lgkmcnt(0)")
    for j in range(8):
        w = 32 + j
        a("v_lshlrev_b32 v50, 16, v%d" % w)
        a("v_and_b32 v51, 0xffff0000, v%d" % w)
        if j < 4:
            a("v_mul_f32 v%d, v11, v50" % (40 + 2 * j))
            a("v_mul_f32 v%d, v11, v51" % (41 + 2 * j))
        else:
            a("v_fmac_f32 v%d, v12, v50" % (40 + 2 * (j - 4)))
            a("v_fmac_f32 v%d, v12, v51" % (41 + 2 * (j - 4)))
    a("""
    v_mul_u32_u24 v13, 2304, v1
    v_lshl_add_u32 v13, v2, 5, v13
    ds_write_b128 v13, v[40:43] offset:%d
    ds_write_b128 v13, v[44:47] offset:%d
    s_waitcnt lgkmcnt(0)
    s_barrier
    v_lshlrev_b32 v14, 2, v0
    """ % (lds_red_off, lds_red_off + 16))
    for r in range(8):
        a("ds_read_b32 v%d, v14 offset:%d" % (40 + r, lds_red_off + r * 2304))
    a("s_waitcnt lgkmcnt(0)")
    for r in range(1, 8):
        a("v_add_f32 v40, v40, v%d" % (40 + r))
    a("""
    s_mul_i32 s21, s20, 2304
    s_add_u32 s21, s21, %d
    v_add_u32 v14, s21, v14
    global_atomic_add_f32 v14, v40, s[%d:%d]
    """ % (acc_off, sbase_ws, sbase_ws + 1))


def gen_k3(a):
    name = "k3_wo_kernel"
    kernel_begin(a, name)
    diag_start(a)
    a("""
    s_cmp_ge_u32 s2, 256
    s_cbranch_scc1 K3_END
    s_load_dwordx2 s[4:5], s[0:1], 32
    s_load_dwordx2 s[8:9], s[0:1], 96
    v_mul_u32_u24 v1, 911, v0
    v_lshrrev_b32 v1, 16, v1
    v_mul_u32_u24 v2, 72, v1
    v_sub_u32 v2, v0, v2
    s_mul_i32 s10, s2, 18432
    v_lshlrev_b32 v3, 4, v0
    v_add_u32 v3, s10, v3
    s_lshr_b32 s11, s2, 3
    s_and_b32 s12, s2, 7
    s_and_b32 s20, s2, 15
    s_waitcnt lgkmcnt(0)
    global_load_dwordx4 v[32:35], v3, s[4:5] nt
    v_add_u32 v3, 9216, v3
    global_load_dwordx4 v[36:39], v3, s[4:5] nt
    """)
    a("""
    v_and_b32 v4, 15, v0
    v_bfe_u32 v5, v0, 4, 2
    s_lshl_b32 s13, s11, 13
    s_lshl_b32 s14, s12, 6
    s_add_u32 s13, s13, s14
    s_add_u32 s13, s13, %d
    v_lshlrev_b32 v6, 11, v5
    v_lshl_add_u32 v6, v4, 2, v6
    v_add_u32 v6, s13, v6
    s_lshl_b32 s15, s11, 7
    s_add_u32 s15, s15, %d
    v_lshlrev_b32 v7, 5, v5
    v_add_u32 v7, s15, v7
    """ % (WS_OP, WS_ML))
    for j in range(4):
        a("global_load_dword v%d, v6, s[8:9] offset:%d" % (60 + j, j * 512))
    a("global_load_dwordx4 v[64:67], v7, s[8:9]")
    a("global_load_dwordx4 v[68:71], v7, s[8:9] offset:16")
    a("""
    v_and_b32 v8, 63, v0
    v_xor_b32 v9, 16, v8
    v_lshlrev_b32 v9, 2, v9
    v_xor_b32 v15, 32, v8
    v_lshlrev_b32 v15, 2, v15
    s_waitcnt vmcnt(0)
    v_max_f32 v72, v64, v66
    v_max3_f32 v72, v72, v68, v70
    ds_bpermute_b32 v73, v9, v72
    s_waitcnt lgkmcnt(0)
    v_max_f32 v72, v72, v73
    ds_bpermute_b32 v73, v15, v72
    s_waitcnt lgkmcnt(0)
    v_max_f32 v72, v72, v73
    """)
    for j in range(4):
        m = 64 + 2 * j
        a("v_sub_f32 v%d, v%d, v72" % (m, m))
        a("v_mul_f32 v%d, 0x3fb8aa3b, v%d" % (m, m))
        a("v_exp_f32 v%d, v%d" % (m, m))
    a("s_nop 0")
    a("v_mul_f32 v74, v64, v65")
    a("v_mul_f32 v75, v64, v60")
    for j in range(1, 4):
        a("v_fmac_f32 v74, v%d, v%d" % (64 + 2 * j, 65 + 2 * j))
        a("v_fmac_f32 v75, v%d, v%d" % (64 + 2 * j, 60 + j))
    a("""
    ds_bpermute_b32 v76, v9, v74
    ds_bpermute_b32 v77, v9, v75
    s_waitcnt lgkmcnt(0)
    v_add_f32 v74, v74, v76
    v_add_f32 v75, v75, v77
    ds_bpermute_b32 v76, v15, v74
    ds_bpermute_b32 v77, v15, v75
    s_waitcnt lgkmcnt(0)
    v_add_f32 v74, v74, v76
    v_add_f32 v75, v75, v77
    v_rcp_f32 v76, v74
    s_nop 0
    v_fma_f32 v77, -v74, v76, 1.0
    v_fmac_f32 v76, v77, v76
    v_mul_f32 v75, v75, v76
    """)
    bf16_round(a, 75)
    a("""
    v_lshlrev_b32 v16, 2, v4
    ds_write_b32 v16, v75
    s_waitcnt lgkmcnt(0)
    s_barrier
    """)
    rowgemv(a, 0, 64, WS_A1, 8, "K3")
    diag_end(a, 2, "DG2")
    a.label("K3_END")
    a("s_endpgm")
    return name, 96


def load_h(a, vh, vtmp, sx, sws, wait=0, part=0):
    if part != 2:
        load_h_issue(a, vtmp, sx, sws)
    if part != 1:
        load_h_finish(a, vh, vtmp, wait)


def load_h_issue(a, vtmp, sx, sws):
    a("v_lshlrev_b32 v14, 2, v0")
    a("v_add_u32 v15, %d, v14" % WS_A1)
    for r in range(16):
        a("global_load_dword v%d, v15, s[%d:%d] offset:%d" % (vtmp + r, sws, sws + 1, 0))
        if r < 15:
            a("v_add_u32 v15, 2304, v15")
    a("v_lshlrev_b32 v16, 1, v0")
    a("global_load_ushort v%d, v16, s[%d:%d]" % (vtmp + 16, sx, sx + 1))


def load_h_finish(a, vh, vtmp, wait):
    a("s_waitcnt vmcnt(%d)" % wait)
    for r in range(1, 16):
        a("v_add_f32 v%d, v%d, v%d" % (vtmp, vtmp, vtmp + r))
    bf16_round(a, vtmp)
    a("v_lshlrev_b32 v%d, 16, v%d" % (vtmp + 16, vtmp + 16))
    a("v_add_f32 v%d, v%d, v%d" % (vh, vtmp, vtmp + 16))
    bf16_round(a, vh)


def gen_k4(a):
    name = "k4_mlp_kernel"
    kernel_begin(a, name)
    diag_start(a)
    stamp(a, 0)
    a("""
    s_cmp_ge_u32 s2, 144
    s_cbranch_scc1 K4_END
    s_load_dwordx2 s[4:5], s[0:1], 0
    s_load_dwordx2 s[6:7], s[0:1], 48
    s_load_dwordx2 s[8:9], s[0:1], 96
    s_load_dwordx2 s[22:23], s[0:1], 56
    s_load_dwordx2 s[24:25], s[0:1], 64
    s_load_dwordx2 s[34:35], s[0:1], 72
    s_load_dwordx2 s[36:37], s[0:1], 80
    v_mul_u32_u24 v1, 911, v0
    v_lshrrev_b32 v1, 16, v1
    v_mul_u32_u24 v2, 72, v1
    v_sub_u32 v2, v0, v2
    s_and_b32 s20, s2, 15
    s_lshl_b32 s10, s2, 6
    v_lshrrev_b32 v3, 2, v0
    v_and_b32 v4, 3, v0
    v_mul_u32_u24 v5, 9216, v3
    v_lshl_add_u32 v5, v4, 4, v5
    v_add_u32 v5, s10, v5
    s_mul_i32 s11, s2, 36864
    v_lshlrev_b32 v6, 4, v0
    v_add_u32 v6, s11, v6
    s_waitcnt lgkmcnt(0)
    """)
    load_h(a, 60, 61, 4, 8, part=1)
    for i in range(4):
        a("global_load_dwordx4 v[%d:%d], v5, s[6:7] nt" % (100 + 4 * i, 103 + 4 * i))
        if i < 3:
            a("v_add_u32 v5, %d, v5" % (144 * 9216))
    for i in range(4):
        a("global_load_dwordx4 v[%d:%d], v6, s[24:25] nt" % (132 + 4 * i, 135 + 4 * i))
        if i < 3:
            a("v_add_u32 v6, 9216, v6")
    a("""
    v_and_b32 v26, 31, v0
    v_lshlrev_b32 v26, 1, v26
    v_add_u32 v26, s10, v26
    global_load_ushort v99, v26, s[22:23]
    """)
    stamp(a, 1)
    load_h(a, 60, 61, 4, 8, wait=9, part=2)
    stamp(a, 2)
    a("v_mov_b32 v59, v60")
    a("""
    ds_write_b32 v14, v60
    s_waitcnt lgkmcnt(0)
    s_barrier
    v_and_b32 v17, 63, v0
    v_lshlrev_b32 v17, 2, v17
    """)
    for i in range(9):
        a("ds_read_b32 v%d, v17 offset:%d" % (60 + i, i * 256))
    a("s_waitcnt lgkmcnt(0)")
    stamp(a, 3)
    layernorm9(a, 60, 70, 26)
    stamp(a, 4)
    a("s_barrier")
    for i in range(9):
        a("ds_write_b32 v17, v%d offset:%d" % (60 + i, i * 256))
    a("s_waitcnt lgkmcnt(0)")
    a("s_barrier")
    a("v_lshlrev_b32 v18, 2, v3")
    for i in range(4):
        a("ds_read_b32 v%d, v18 offset:%d" % (60 + i, i * 576))
    for j in range(8):
        a("v_mov_b32 v%d, 0" % (40 + j))
    a("s_waitcnt lgkmcnt(0)")
    for i in range(4):
        a("s_waitcnt vmcnt(%d)" % (7 - i))
        for j in range(4):
            w = 100 + 4 * i + j
            a("v_lshlrev_b32 v50, 16, v%d" % w)
            a("v_and_b32 v51, 0xffff0000, v%d" % w)
            a("v_fmac_f32 v%d, v%d, v50" % (40 + 2 * j, 60 + i))
            a("v_fmac_f32 v%d, v%d, v51" % (41 + 2 * j, 60 + i))
    stamp(a, 5)
    for rr in (8, 4):
        a("s_nop 1")
        for n in range(8):
            a("v_add_f32_dpp v%d, v%d, v%d row_ror:%d row_mask:0xf bank_mask:0xf" % (40 + n, 40 + n, 40 + n, rr))
    a("""
    v_and_b32 v21, 63, v0
    v_xor_b32 v22, 16, v21
    v_lshlrev_b32 v22, 2, v22
    v_xor_b32 v23, 32, v21
    v_lshlrev_b32 v23, 2, v23
    """)
    for addr in (22, 23):
        for n in range(8):
            a("ds_bpermute_b32 v%d, v%d, v%d" % (50 + n, addr, 40 + n))
        a("s_waitcnt lgkmcnt(0)")
        for n in range(8):
            a("v_add_f32 v%d, v%d, v%d" % (40 + n, 40 + n, 50 + n))
    a("""
    v_lshrrev_b32 v24, 6, v0
    v_lshlrev_b32 v24, 8, v24
    v_lshl_add_u32 v24, v4, 5, v24
    v_cmp_gt_u32 vcc, 4, v21
    s_and_saveexec_b64 s[16:17], vcc
    ds_write_b128 v24, v[40:43] offset:2304
    ds_write_b128 v24, v[44:47] offset:2320
    s_mov_b64 exec, s[16:17]
    s_waitcnt lgkmcnt(0)
    s_barrier
    v_cmp_gt_u32 vcc, 32, v0
    s_and_saveexec_b64 s[16:17], vcc
    v_lshlrev_b32 v25, 2, v0
    """)
    for w in range(9):
        a("ds_read_b32 v%d, v25 offset:%d" % (40 + w, 2304 + w * 256))
    a("s_waitcnt lgkmcnt(0)")
    for w in range(1, 9):
        a("v_add_f32 v40, v40, v%d" % (40 + w))
    bf16_round(a, 40)
    a("v_lshlrev_b32 v99, 16, v99")
    a("v_add_f32 v40, v40, v99")
    bf16_round(a, 40)
    a("v_max_f32 v40, 0, v40")
    a("v_mul_f32 v40, v40, v40")
    bf16_round(a, 40)
    a("""
    ds_write_b32 v25, v40 offset:4608
    s_mov_b64 exec, s[16:17]
    s_waitcnt lgkmcnt(0)
    s_barrier
    v_lshlrev_b32 v10, 2, v1
    """)
    for i in range(4):
        a("ds_read_b32 v%d, v10 offset:%d" % (60 + i, 4608 + 32 * i))
    for j in range(8):
        a("v_mov_b32 v%d, 0" % (40 + j))
    stamp(a, 6)
    a("s_waitcnt vmcnt(0) lgkmcnt(0)")
    stamp(a, 7)
    for i in range(4):
        for j in range(4):
            w = 132 + 4 * i + j
            a("v_lshlrev_b32 v50, 16, v%d" % w)
            a("v_and_b32 v51, 0xffff0000, v%d" % w)
            a("v_fmac_f32 v%d, v%d, v50" % (40 + 2 * j, 60 + i))
            a("v_fmac_f32 v%d, v%d, v51" % (41 + 2 * j, 60 + i))
    a("""
    v_mul_u32_u24 v13, 2304, v1
    v_lshl_add_u32 v13, v2, 5, v13
    ds_write_b128 v13, v[40:43] offset:4864
    ds_write_b128 v13, v[44:47] offset:4880
    s_waitcnt lgkmcnt(0)
    s_barrier
    v_lshlrev_b32 v14, 2, v0
    """)
    for r in range(8):
        a("ds_read_b32 v%d, v14 offset:%d" % (40 + r, 4864 + r * 2304))
    a("s_waitcnt lgkmcnt(0)")
    for r in range(1, 8):
        a("v_add_f32 v40, v40, v%d" % (40 + r))
    a("""
    s_mul_i32 s21, s20, 2304
    s_add_u32 s21, s21, %d
    v_add_u32 v14, s21, v14
    global_atomic_add_f32 v14, v40, s[8:9]
    """ % WS_A2)
    stamp(a, 8)
    a("s_waitcnt vmcnt(0)")
    stamp(a, 9)
    stamp_flush(a, 10, "K4_SF")
    a("""
    s_waitcnt vmcnt(0)
    s_barrier
    v_cmp_eq_u32 vcc, 0, v0
    s_and_saveexec_b64 s[16:17], vcc
    v_mov_b32 v40, 1
    v_mov_b32 v41, %d
    global_atomic_add v42, v41, v40, s[8:9] sc0
    s_waitcnt vmcnt(0)
    v_mov_b32 v41, 0
    ds_write_b32 v41, v42
    s_mov_b64 exec, s[16:17]
    s_waitcnt lgkmcnt(0)
    s_barrier
    v_mov_b32 v41, 0
    ds_read_b32 v42, v41
    s_waitcnt lgkmcnt(0)
    v_readfirstlane_b32 s33, v42
    s_cmp_lg_u32 s33, 143
    s_cbranch_scc1 K4_END
    v_lshlrev_b32 v14, 2, v0
    v_add_u32 v15, %d, v14
    """ % (WS_END, WS_A2))
    for r in range(16):
        a("global_load_dword v%d, v15, s[8:9] sc0 sc1" % (61 + r))
        if r < 15:
            a("v_add_u32 v15, 2304, v15")
    a("v_lshlrev_b32 v16, 1, v0")
    a("global_load_ushort v77, v16, s[34:35]")
    a("s_waitcnt vmcnt(0)")
    for r in range(1, 16):
        a("v_add_f32 v61, v61, v%d" % (61 + r))
    bf16_round(a, 61)
    a("v_lshlrev_b32 v77, 16, v77")
    a("v_add_f32 v61, v61, v77")
    bf16_round(a, 61)
    a("v_add_f32 v61, v61, v59")
    a("v_cvt_pk_bf16_f32 v61, v61, v61")
    a("global_store_short v16, v61, s[36:37]")
    diag_end(a, 3, "DG3")
    a.label("K4_END")
    a("s_endpgm")
    return name, 168


def gen_k5(a):
    name = "k5_final_kernel"
    kernel_begin(a, name)
    a("""
    s_cmp_ge_u32 s2, 1
    s_cbranch_scc1 K5_END
    s_load_dwordx2 s[4:5], s[0:1], 0
    s_load_dwordx2 s[8:9], s[0:1], 96
    s_load_dwordx2 s[10:11], s[0:1], 72
    s_load_dwordx2 s[12:13], s[0:1], 80
    s_waitcnt lgkmcnt(0)
    """)
    load_h(a, 60, 61, 4, 8)
    a("v_add_u32 v15, %d, v14" % WS_A2)
    for r in range(16):
        a("global_load_dword v%d, v15, s[8:9]" % (61 + r))
        if r < 15:
            a("v_add_u32 v15, 2304, v15")
    a("global_load_ushort v77, v16, s[10:11]")
    a("s_waitcnt vmcnt(0)")
    for r in range(1, 16):
        a("v_add_f32 v61, v61, v%d" % (61 + r))
    bf16_round(a, 61)
    a("v_lshlrev_b32 v77, 16, v77")
    a("v_add_f32 v61, v61, v77")
    bf16_round(a, 61)
    a("v_add_f32 v61, v61, v60")
    a("v_cvt_pk_bf16_f32 v61, v61, v61")
    a("global_store_short v16, v61, s[12:13]")
    a.label("K5_END")
    a("s_endpgm")
    return name, 96


def main():
    a = Asm()
    launches = [
        ("k1_qproj_kernel", 128, 256, 2304 + 8192),
        ("k2_attn_kernel", 256, 512, 33280),
        ("k3_wo_kernel", 256, 576, 64 + 18432),
        ("k4_mlp_kernel", 144, 576, 4864 + 18432),
    ]
    hdr = HEADER
    for k, g, b, l in launches:
        hdr += "; @launch kernel=%s grid=(%d,1,1) block=(%d,1,1) lds=%d\n" % (k, g, b, l)
    a.raw(hdr + '.amdgcn_target "amdgcn-amd-amdhsa--gfx950"\n.text')
    descs = []
    for g in (gen_k1, gen_k2, gen_k3, gen_k4):
        n, v = g(a)
        descs.append(kernel_desc(n, v))
    a.raw('.section .rodata,"a"')
    for d in descs:
        a.raw(".p2align 6")
        a.raw(d)
    open(OUT, "w").write(a.text())
    print("wrote", OUT, len(a.text()), "bytes")


if __name__ == "__main__":
    main()
```

```python
import sys

NAME = "sequential_preLN__sliding_block_cached__dense_activation_squared_relu__decode"
OUT = "cdna_kernels/%s.s" % NAME

WS_QP = 0
WS_OP = 65536
WS_ML = WS_OP + 32 * 16 * 128 * 4
WS_A1 = WS_ML + 32 * 16 * 2 * 4
WS_A2 = WS_A1 + 16 * 576 * 4
WS_END = WS_A2 + 16 * 576 * 4

HEADER = open("cdna_kernels/%s.s.ref" % NAME).read().split("; Override launch geometry")[0]


class Asm:
    def __init__(self):
        self.lines = []

    def __call__(self, s):
        for ln in s.strip("\n").split("\n"):
            self.lines.append("    " + ln.strip())

    def label(self, name):
        self.lines.append(name + ":")

    def raw(self, s):
        self.lines.append(s)

    def text(self):
        return "\n".join(self.lines) + "\n"


def kernel_begin(a, name):
    a.raw(".p2align 8")
    a.raw(".globl %s" % name)
    a.raw(".type %s,@function" % name)
    a.label(name)


def kernel_desc(name, vgpr, sgpr=102):
    acc = (vgpr + 3) // 4 * 4
    return """.amdhsa_kernel %s
  .amdhsa_next_free_vgpr %d
  .amdhsa_next_free_sgpr %d
  .amdhsa_accum_offset %d
  .amdhsa_group_segment_fixed_size 0
  .amdhsa_kernarg_size 104
  .amdhsa_user_sgpr_count 2
  .amdhsa_user_sgpr_kernarg_segment_ptr 1
  .amdhsa_system_sgpr_workgroup_id_x 1
.end_amdhsa_kernel
""" % (name, vgpr, sgpr, acc)


STAMPS = False


def stamp(a, k):
    if STAMPS:
        a("s_memrealtime s[%d:%d]" % (60 + 2 * k, 61 + 2 * k))


def stamp_flush(a, n, label):
    if not STAMPS:
        return
    a("s_waitcnt lgkmcnt(0)")
    a("s_cmp_lg_u32 s2, 0")
    a("s_cbranch_scc1 %s" % label)
    a("s_load_dwordx2 s[58:59], s[0:1], 88")
    a("s_mov_b64 exec, 1")
    a("v_mov_b32 v160, 0")
    a("s_waitcnt lgkmcnt(0)")
    for k in range(n):
        a("v_mov_b32 v161, s%d" % (60 + 2 * k))
        a("global_store_dword v160, v161, s[58:59] offset:%d" % (4 * k))
    a.label(label)


DIAG = False


def diag_start(a):
    if DIAG:
        a("s_memrealtime s[90:91]")


def diag_mid(a):
    if DIAG:
        a("s_memrealtime s[92:93]")


def diag_end(a, idx, label):
    if not DIAG:
        return
    a("s_waitcnt vmcnt(0) lgkmcnt(0)")
    a("s_memrealtime s[94:95]")
    a("s_cmp_lg_u32 s2, 0")
    a("s_cbranch_scc1 %s" % label)
    a("s_load_dwordx2 s[96:97], s[0:1], 88")
    a("s_waitcnt lgkmcnt(0)")
    a("s_sub_u32 s96, s96, %d" % (idx * 512))
    a("s_subb_u32 s97, s97, 0")
    a("s_mov_b64 exec, 1")
    a("v_mov_b32 v90, 0")
    for k, sr in enumerate((90, 92, 94)):
        a("v_mov_b32 v91, s%d" % sr)
        a("global_store_dword v90, v91, s[96:97] offset:%d" % (idx * 16 + 4 * k))
    a.label(label)


def bf16_round(a, v, n=1):
    for i in range(n):
        a("v_cvt_pk_bf16_f32 v%d, v%d, v%d" % (v + i, v + i, v + i))
    for i in range(n):
        a("v_lshlrev_b32 v%d, 16, v%d" % (v + i, v + i))


def row_allreduce(a, v, op="add"):
    for r in (8, 4, 2, 1):
        a("s_nop 1")
        a("v_%s_f32_dpp v%d, v%d, v%d row_ror:%d row_mask:0xf bank_mask:0xf" % (op, v, v, v, r))


def wave_allreduce_to_sgpr(a, v, s, op="add"):
    row_allreduce(a, v, op)
    a("s_nop 1")
    a("v_readlane_b32 s%d, v%d, 0" % (s, v))
    a("v_readlane_b32 s%d, v%d, 16" % (s + 1, v))
    a("v_readlane_b32 s%d, v%d, 32" % (s + 2, v))
    a("v_readlane_b32 s%d, v%d, 48" % (s + 3, v))
    a("s_nop 1")
    a("v_mov_b32 v%d, s%d" % (v, s))
    a("v_%s_f32 v%d, s%d, v%d" % (op, v, s + 1, v))
    a("v_%s_f32 v%d, s%d, v%d" % (op, v, s + 2, v))
    a("v_%s_f32 v%d, s%d, v%d" % (op, v, s + 3, v))


def layernorm9(a, vx, vt, s):
    a("v_add_f32 v%d, v%d, v%d" % (vt, vx, vx + 1))
    for i in range(2, 9):
        a("v_add_f32 v%d, v%d, v%d" % (vt, vt, vx + i))
    wave_allreduce_to_sgpr(a, vt, s)
    a("v_mul_f32 v%d, 0x3ae38e39, v%d" % (vt, vt))
    a("v_sub_f32 v%d, v%d, v%d" % (vt + 2, vx, vt))
    a("v_mul_f32 v%d, v%d, v%d" % (vt + 1, vt + 2, vt + 2))
    for i in range(1, 9):
        a("v_sub_f32 v%d, v%d, v%d" % (vt + 2, vx + i, vt))
        a("v_fmac_f32 v%d, v%d, v%d" % (vt + 1, vt + 2, vt + 2))
    wave_allreduce_to_sgpr(a, vt + 1, s)
    a("v_mul_f32 v%d, 0x3ae38e39, v%d" % (vt + 1, vt + 1))
    bf16_round(a, vt, 2)
    a("v_add_f32 v%d, 0x3727c5ac, v%d" % (vt + 1, vt + 1))
    bf16_round(a, vt + 1)
    a("v_sqrt_f32 v%d, v%d" % (vt + 1, vt + 1))
    a("s_nop 0")
    bf16_round(a, vt + 1)
    a("v_rcp_f32 v%d, v%d" % (vt + 2, vt + 1))
    a("s_nop 0")
    a("v_fma_f32 v%d, -v%d, v%d, 1.0" % (vt + 3, vt + 1, vt + 2))
    a("v_fmac_f32 v%d, v%d, v%d" % (vt + 2, vt + 3, vt + 2))
    for i in range(9):
        a("v_sub_f32 v%d, v%d, v%d" % (vx + i, vx + i, vt))
    bf16_round(a, vx, 9)
    for i in range(9):
        a("v_mul_f32 v%d, v%d, v%d" % (vt + 3, vx + i, vt + 2))
        a("v_fma_f32 v%d, -v%d, v%d, v%d" % (vx + i, vt + 1, vt + 3, vx + i))
        a("v_fma_f32 v%d, v%d, v%d, v%d" % (vx + i, vx + i, vt + 2, vt + 3))
    bf16_round(a, vx, 9)


def gen_k1(a):
    name = "k1_qproj_kernel"
    kernel_begin(a, name)
    diag_start(a)
    a("""
    s_cmp_ge_u32 s2, 128
    s_cbranch_scc1 K1_END
    s_load_dwordx2 s[4:5], s[0:1], 0
    s_load_dwordx2 s[6:7], s[0:1], 24
    s_load_dwordx2 s[8:9], s[0:1], 96
    s_and_b32 s10, s2, 31
    s_lshr_b32 s11, s2, 5
    s_mul_i32 s12, s11, 144
    v_and_b32 v1, 15, v0
    v_lshrrev_b32 v2, 4, v0
    v_add_u32 v3, s12, v2
    v_lshlrev_b32 v4, 13, v3
    s_lshl_b32 s13, s10, 8
    v_lshlrev_b32 v5, 4, v1
    v_add3_u32 v4, v4, v5, s13
    v_and_b32 v6, 63, v0
    v_lshlrev_b32 v7, 1, v6
    s_waitcnt lgkmcnt(0)
    """)
    for i in range(9):
        a("global_load_ushort v%d, v7, s[4:5] offset:%d" % (10 + i, i * 128))
    for i in range(9):
        if i:
            a("v_add_u32 v4, 0x20000, v4")
        a("global_load_dwordx4 v[%d:%d], v4, s[6:7] nt" % (32 + 4 * i, 35 + 4 * i))
    a("s_waitcnt vmcnt(9)")
    a("""
    s_mul_i32 s14, s2, 576
    v_lshlrev_b32 v8, 2, v0
    v_add_u32 v8, s14, v8
    v_add_u32 v8, %d, v8
    v_mov_b32 v9, 0
    v_cmp_gt_u32 vcc, 144, v0
    s_and_saveexec_b64 s[16:17], vcc
    global_store_dword v8, v9, s[8:9]
    v_mov_b32 v8, %d
    global_store_dword v8, v9, s[8:9]
    s_mov_b64 exec, s[16:17]
    """ % (WS_A1, WS_END))
    for i in range(9):
        a("v_lshlrev_b32 v%d, 16, v%d" % (10 + i, 10 + i))
    layernorm9(a, 10, 20, 20)
    a("v_lshlrev_b32 v24, 2, v6")
    for i in range(9):
        a("ds_write_b32 v24, v%d offset:%d" % (10 + i, i * 256))
    a("s_waitcnt lgkmcnt(0)")
    a("s_barrier")
    a("v_lshlrev_b32 v25, 2, v3")
    for i in range(9):
        a("ds_read_b32 v%d, v25 offset:%d" % (10 + i, i * 64))
    for j in range(8):
        a("v_mov_b32 v%d, 0" % (70 + j))
    a("s_waitcnt lgkmcnt(0)")
    for i in range(9):
        a("s_waitcnt vmcnt(0)" if i == 0 else "s_nop 0")
        for j in range(4):
            w = 32 + 4 * i + j
            a("v_lshlrev_b32 v80, 16, v%d" % w)
            a("v_and_b32 v81, 0xffff0000, v%d" % w)
            a("v_fmac_f32 v%d, v%d, v80" % (70 + 2 * j, 10 + i))
            a("v_fmac_f32 v%d, v%d, v81" % (71 + 2 * j, 10 + i))
    a("""
    v_lshlrev_b32 v26, 9, v2
    v_lshl_add_u32 v26, v1, 5, v26
    ds_write_b128 v26, v[70:73] offset:2304
    ds_write_b128 v26, v[74:77] offset:2320
    s_waitcnt lgkmcnt(0)
    s_barrier
    v_cmp_gt_u32 vcc, 128, v0
    s_and_saveexec_b64 s[16:17], vcc
    s_cbranch_execz K1_END
    v_lshlrev_b32 v27, 2, v0
    """)
    for r in range(16):
        a("ds_read_b32 v%d, v27 offset:%d" % (32 + r, 2304 + r * 512))
    a("s_waitcnt lgkmcnt(0)")
    for r in range(1, 16):
        a("v_add_f32 v32, v32, v%d" % (32 + r))
    a("""
    s_lshl_b32 s14, s11, 14
    s_lshl_b32 s15, s10, 9
    s_add_u32 s14, s14, s15
    v_add_u32 v27, s14, v27
    global_store_dword v27, v32, s[8:9]
    """)
    diag_end(a, 0, "DG0")
    a.label("K1_END")
    a("s_endpgm")
    return name, 96


def gen_k2(a):
    name = "k2_attn_kernel"
    kernel_begin(a, name)
    diag_start(a)
    KB = 32
    VB = 64
    QT = 96
    a("""
    s_cmp_ge_u32 s2, 256
    s_cbranch_scc1 K2_END
    s_load_dwordx2 s[4:5], s[0:1], 8
    s_load_dwordx2 s[6:7], s[0:1], 16
    s_load_dwordx2 s[8:9], s[0:1], 96
    s_load_dwordx2 s[18:19], s[0:1], 0
    s_load_dwordx2 s[20:21], s[0:1], 24
    s_lshr_b32 s10, s2, 4
    s_and_b32 s11, s2, 15
    s_lshl_b32 s12, s10, 24
    s_lshl_b32 s13, s11, 16
    s_add_u32 s12, s12, s13
    s_add_u32 s12, s12, 0xf00000
    v_and_b32 v1, 63, v0
    v_lshlrev_b32 v1, 4, v1
    v_lshrrev_b32 v2, 6, v0
    v_lshl_add_u32 v1, v2, 13, v1
    v_add_u32 v1, s12, v1
    v_add_u32 v2, 0x1000, v1
    v_and_b32 v3, 15, v0
    v_lshlrev_b32 v4, 5, v3
    s_lshl_b32 s14, s10, 10
    v_add_u32 v4, s14, v4
    s_waitcnt lgkmcnt(0)
    """)
    for ks in range(4):
        for h in range(2):
            for half in range(2):
                idx = (ks * 2 + h) * 2 + half
                a("global_load_dwordx4 v[%d:%d], v4, s[8:9] offset:%d" %
                  (QT + 4 * idx, QT + 4 * idx + 3, h * 512 + half * 16))
        if ks < 3:
            a("v_add_u32 v4, 0x4000, v4")
    for i in range(8):
        a("global_load_dwordx4 v[%d:%d], v%d, s[4:5] offset:%d nt" % (KB + 4 * i, KB + 4 * i + 3, 1 if i < 4 else 2, (i % 4) * 1024))
    for i in range(8):
        a("global_load_dwordx4 v[%d:%d], v%d, s[6:7] offset:%d nt" % (VB + 4 * i, VB + 4 * i + 3, 1 if i < 4 else 2, (i % 4) * 1024))
    a("s_waitcnt vmcnt(16)")
    for h in range(2):
        for half in range(2):
            base = QT + 4 * (h * 2 + half)
            for ks in range(1, 4):
                o = QT + 4 * ((ks * 2 + h) * 2 + half)
                for j in range(4):
                    a("v_add_f32 v%d, v%d, v%d" % (base + j, base + j, o + j))
            a("v_cvt_pk_bf16_f32 v%d, v%d, v%d" % (10 + h * 4 + half * 2, base, base + 1))
            a("v_cvt_pk_bf16_f32 v%d, v%d, v%d" % (11 + h * 4 + half * 2, base + 2, base + 3))
    S = 100
    for i in range(8):
        a("s_waitcnt vmcnt(%d)" % (15 - i))
        for h in range(2):
            a("v_mov_b32 v%d, 0" % (S + h * 8 + i))
            for j in range(4):
                a("v_dot2c_f32_bf16 v%d, v%d, v%d" % (S + h * 8 + i, KB + 4 * i + j, 10 + h * 4 + j))
    for r in (8, 4, 2, 1):
        a("s_nop 1")
        for n in range(16):
            a("v_add_f32_dpp v%d, v%d, v%d row_ror:%d row_mask:0xf bank_mask:0xf" % (S + n, S + n, S + n, r))
    bf16_round(a, S, 16)
    for n in range(16):
        a("v_mul_f32 v%d, 0x3db504f3, v%d" % (S + n, S + n))
    bf16_round(a, S, 16)
    for h in range(2):
        a("v_max3_f32 v%d, v%d, v%d, v%d" % (20 + h, S + h * 8, S + h * 8 + 1, S + h * 8 + 2))
        a("v_max3_f32 v%d, v%d, v%d, v%d" % (20 + h, 20 + h, S + h * 8 + 3, S + h * 8 + 4))
        a("v_max3_f32 v%d, v%d, v%d, v%d" % (20 + h, 20 + h, S + h * 8 + 5, S + h * 8 + 6))
        a("v_max_f32 v%d, v%d, v%d" % (20 + h, 20 + h, S + h * 8 + 7))
    for h in range(2):
        for i in range(8):
            a("v_sub_f32 v%d, v%d, v%d" % (S + h * 8 + i, S + h * 8 + i, 20 + h))
            a("v_mul_f32 v%d, 0x3fb8aa3b, v%d" % (S + h * 8 + i, S + h * 8 + i))
            a("v_exp_f32 v%d, v%d" % (S + h * 8 + i, S + h * 8 + i))
    a("s_nop 0")
    for h in range(2):
        a("v_add_f32 v%d, v%d, v%d" % (22 + h, S + h * 8, S + h * 8 + 1))
        for i in range(2, 8):
            a("v_add_f32 v%d, v%d, v%d" % (22 + h, 22 + h, S + h * 8 + i))
    O = 120
    for n in range(16):
        a("v_mov_b32 v%d, 0" % (O + n))
    for i in range(8):
        a("s_waitcnt vmcnt(%d)" % (7 - i))
        for j in range(4):
            w = VB + 4 * i + j
            a("v_lshlrev_b32 v140, 16, v%d" % w)
            a("v_and_b32 v141, 0xffff0000, v%d" % w)
            for h in range(2):
                a("v_fmac_f32 v%d, v%d, v140" % (O + h * 8 + 2 * j, S + h * 8 + i))
                a("v_fmac_f32 v%d, v%d, v141" % (O + h * 8 + 2 * j + 1, S + h * 8 + i))
    a("""
    v_lshrrev_b32 v5, 4, v0
    v_lshlrev_b32 v6, 9, v5
    v_lshl_add_u32 v6, v3, 5, v6
    ds_write_b128 v6, v[120:123]
    ds_write_b128 v6, v[124:127] offset:16
    ds_write_b128 v6, v[128:131] offset:16384
    ds_write_b128 v6, v[132:135] offset:16400
    v_lshlrev_b32 v7, 3, v5
    v_mov_b32 v24, v20
    v_mov_b32 v25, v22
    v_mov_b32 v26, v21
    v_mov_b32 v27, v23
    ds_write_b64 v7, v[24:25] offset:32768
    ds_write_b64 v7, v[26:27] offset:33024
    s_waitcnt lgkmcnt(0)
    s_barrier
    v_cmp_gt_u32 vcc, 256, v0
    s_and_saveexec_b64 s[16:17], vcc
    s_cbranch_execz K2_END
    v_lshrrev_b32 v5, 7, v0
    v_and_b32 v6, 127, v0
    v_lshlrev_b32 v7, 8, v5
    v_lshlrev_b32 v8, 14, v5
    v_lshl_add_u32 v8, v6, 2, v8
    """)
    for r in range(32):
        a("ds_read_b64 v[%d:%d], v7 offset:%d" % (32 + 2 * r, 33 + 2 * r, 32768 + r * 8))
        a("ds_read_b32 v%d, v8 offset:%d" % (100 + r, r * 512))
    a("s_waitcnt lgkmcnt(0)")
    a("v_max_f32 v20, v32, v34")
    for r in range(2, 32):
        a("v_max_f32 v20, v20, v%d" % (32 + 2 * r))
    for r in range(32):
        a("v_sub_f32 v%d, v%d, v20" % (32 + 2 * r, 32 + 2 * r))
        a("v_mul_f32 v%d, 0x3fb8aa3b, v%d" % (32 + 2 * r, 32 + 2 * r))
        a("v_exp_f32 v%d, v%d" % (32 + 2 * r, 32 + 2 * r))
    a("s_nop 0")
    a("v_mul_f32 v21, v32, v33")
    a("v_mul_f32 v22, v32, v100")
    for r in range(1, 32):
        a("v_fmac_f32 v21, v%d, v%d" % (32 + 2 * r, 33 + 2 * r))
        a("v_fmac_f32 v22, v%d, v%d" % (32 + 2 * r, 100 + r))
    a("""
    s_lshl_b32 s14, s10, 1
    v_add_u32 v9, s14, v5
    v_lshl_add_u32 v9, v9, 4, s11
    v_lshlrev_b32 v10, 9, v9
    v_lshl_add_u32 v10, v6, 2, v10
    v_add_u32 v10, %d, v10
    global_store_dword v10, v22, s[8:9]
    v_lshlrev_b32 v11, 3, v9
    v_add_u32 v11, %d, v11
    v_cmp_eq_u32 vcc, 0, v6
    s_and_saveexec_b64 s[16:17], vcc
    global_store_dwordx2 v11, v[20:21], s[8:9]
    """ % (WS_OP, WS_ML))
    diag_end(a, 1, "DG1")
    a.label("K2_END")
    a("s_endpgm")
    return name, 160


def rowgemv(a, lds_vec_off, lds_red_off, acc_off, sbase_ws, tagl):
    a("v_lshlrev_b32 v10, 2, v1")
    a("ds_read_b32 v11, v10 offset:%d" % lds_vec_off)
    a("ds_read_b32 v12, v10 offset:%d" % (lds_vec_off + 32))
    a("s_waitcnt vmcnt(0) lgkmcnt(0)")
    for j in range(8):
        w = 32 + j
        a("v_lshlrev_b32 v50, 16, v%d" % w)
        a("v_and_b32 v51, 0xffff0000, v%d" % w)
        if j < 4:
            a("v_mul_f32 v%d, v11, v50" % (40 + 2 * j))
            a("v_mul_f32 v%d, v11, v51" % (41 + 2 * j))
        else:
            a("v_fmac_f32 v%d, v12, v50" % (40 + 2 * (j - 4)))
            a("v_fmac_f32 v%d, v12, v51" % (41 + 2 * (j - 4)))
    a("""
    v_mul_u32_u24 v13, 2304, v1
    v_lshl_add_u32 v13, v2, 5, v13
    ds_write_b128 v13, v[40:43] offset:%d
    ds_write_b128 v13, v[44:47] offset:%d
    s_waitcnt lgkmcnt(0)
    s_barrier
    v_lshlrev_b32 v14, 2, v0
    """ % (lds_red_off, lds_red_off + 16))
    for r in range(8):
        a("ds_read_b32 v%d, v14 offset:%d" % (40 + r, lds_red_off + r * 2304))
    a("s_waitcnt lgkmcnt(0)")
    for r in range(1, 8):
        a("v_add_f32 v40, v40, v%d" % (40 + r))
    a("""
    s_mul_i32 s21, s20, 2304
    s_add_u32 s21, s21, %d
    v_add_u32 v14, s21, v14
    global_atomic_add_f32 v14, v40, s[%d:%d]
    """ % (acc_off, sbase_ws, sbase_ws + 1))


def gen_k3(a):
    name = "k3_wo_kernel"
    kernel_begin(a, name)
    diag_start(a)
    a("""
    s_cmp_ge_u32 s2, 256
    s_cbranch_scc1 K3_END
    s_load_dwordx2 s[4:5], s[0:1], 32
    s_load_dwordx2 s[8:9], s[0:1], 96
    v_mul_u32_u24 v1, 911, v0
    v_lshrrev_b32 v1, 16, v1
    v_mul_u32_u24 v2, 72, v1
    v_sub_u32 v2, v0, v2
    s_mul_i32 s10, s2, 18432
    v_lshlrev_b32 v3, 4, v0
    v_add_u32 v3, s10, v3
    s_lshr_b32 s11, s2, 3
    s_and_b32 s12, s2, 7
    s_and_b32 s20, s2, 15
    s_waitcnt lgkmcnt(0)
    global_load_dwordx4 v[32:35], v3, s[4:5] nt
    v_add_u32 v3, 9216, v3
    global_load_dwordx4 v[36:39], v3, s[4:5] nt
    """)
    a("""
    v_and_b32 v4, 15, v0
    v_bfe_u32 v5, v0, 4, 2
    s_lshl_b32 s13, s11, 13
    s_lshl_b32 s14, s12, 6
    s_add_u32 s13, s13, s14
    s_add_u32 s13, s13, %d
    v_lshlrev_b32 v6, 11, v5
    v_lshl_add_u32 v6, v4, 2, v6
    v_add_u32 v6, s13, v6
    s_lshl_b32 s15, s11, 7
    s_add_u32 s15, s15, %d
    v_lshlrev_b32 v7, 5, v5
    v_add_u32 v7, s15, v7
    """ % (WS_OP, WS_ML))
    for j in range(4):
        a("global_load_dword v%d, v6, s[8:9] offset:%d" % (60 + j, j * 512))
    a("global_load_dwordx4 v[64:67], v7, s[8:9]")
    a("global_load_dwordx4 v[68:71], v7, s[8:9] offset:16")
    a("""
    v_and_b32 v8, 63, v0
    v_xor_b32 v9, 16, v8
    v_lshlrev_b32 v9, 2, v9
    v_xor_b32 v15, 32, v8
    v_lshlrev_b32 v15, 2, v15
    s_waitcnt vmcnt(0)
    v_max_f32 v72, v64, v66
    v_max3_f32 v72, v72, v68, v70
    ds_bpermute_b32 v73, v9, v72
    s_waitcnt lgkmcnt(0)
    v_max_f32 v72, v72, v73
    ds_bpermute_b32 v73, v15, v72
    s_waitcnt lgkmcnt(0)
    v_max_f32 v72, v72, v73
    """)
    for j in range(4):
        m = 64 + 2 * j
        a("v_sub_f32 v%d, v%d, v72" % (m, m))
        a("v_mul_f32 v%d, 0x3fb8aa3b, v%d" % (m, m))
        a("v_exp_f32 v%d, v%d" % (m, m))
    a("s_nop 0")
    a("v_mul_f32 v74, v64, v65")
    a("v_mul_f32 v75, v64, v60")
    for j in range(1, 4):
        a("v_fmac_f32 v74, v%d, v%d" % (64 + 2 * j, 65 + 2 * j))
        a("v_fmac_f32 v75, v%d, v%d" % (64 + 2 * j, 60 + j))
    a("""
    ds_bpermute_b32 v76, v9, v74
    ds_bpermute_b32 v77, v9, v75
    s_waitcnt lgkmcnt(0)
    v_add_f32 v74, v74, v76
    v_add_f32 v75, v75, v77
    ds_bpermute_b32 v76, v15, v74
    ds_bpermute_b32 v77, v15, v75
    s_waitcnt lgkmcnt(0)
    v_add_f32 v74, v74, v76
    v_add_f32 v75, v75, v77
    v_rcp_f32 v76, v74
    s_nop 0
    v_fma_f32 v77, -v74, v76, 1.0
    v_fmac_f32 v76, v77, v76
    v_mul_f32 v75, v75, v76
    """)
    bf16_round(a, 75)
    a("""
    v_lshlrev_b32 v16, 2, v4
    ds_write_b32 v16, v75
    s_waitcnt lgkmcnt(0)
    s_barrier
    """)
    rowgemv(a, 0, 64, WS_A1, 8, "K3")
    diag_end(a, 2, "DG2")
    a.label("K3_END")
    a("s_endpgm")
    return name, 96


def load_h(a, vh, vtmp, sx, sws, wait=0, part=0):
    if part != 2:
        load_h_issue(a, vtmp, sx, sws)
    if part != 1:
        load_h_finish(a, vh, vtmp, wait)


def load_h_issue(a, vtmp, sx, sws):
    a("v_lshlrev_b32 v14, 2, v0")
    a("v_add_u32 v15, %d, v14" % WS_A1)
    for r in range(16):
        a("global_load_dword v%d, v15, s[%d:%d] offset:%d" % (vtmp + r, sws, sws + 1, 0))
        if r < 15:
            a("v_add_u32 v15, 2304, v15")
    a("v_lshlrev_b32 v16, 1, v0")
    a("global_load_ushort v%d, v16, s[%d:%d]" % (vtmp + 16, sx, sx + 1))


def load_h_finish(a, vh, vtmp, wait):
    a("s_waitcnt vmcnt(%d)" % wait)
    for r in range(1, 16):
        a("v_add_f32 v%d, v%d, v%d" % (vtmp, vtmp, vtmp + r))
    bf16_round(a, vtmp)
    a("v_lshlrev_b32 v%d, 16, v%d" % (vtmp + 16, vtmp + 16))
    a("v_add_f32 v%d, v%d, v%d" % (vh, vtmp, vtmp + 16))
    bf16_round(a, vh)


def gen_k4(a):
    name = "k4_mlp_kernel"
    kernel_begin(a, name)
    diag_start(a)
    stamp(a, 0)
    a("""
    s_cmp_ge_u32 s2, 144
    s_cbranch_scc1 K4_END
    s_load_dwordx2 s[4:5], s[0:1], 0
    s_load_dwordx2 s[6:7], s[0:1], 48
    s_load_dwordx2 s[8:9], s[0:1], 96
    s_load_dwordx2 s[22:23], s[0:1], 56
    s_load_dwordx2 s[24:25], s[0:1], 64
    s_load_dwordx2 s[34:35], s[0:1], 72
    s_load_dwordx2 s[36:37], s[0:1], 80
    v_mul_u32_u24 v1, 911, v0
    v_lshrrev_b32 v1, 16, v1
    v_mul_u32_u24 v2, 72, v1
    v_sub_u32 v2, v0, v2
    s_and_b32 s20, s2, 15
    s_lshl_b32 s10, s2, 6
    v_lshrrev_b32 v3, 2, v0
    v_and_b32 v4, 3, v0
    v_mul_u32_u24 v5, 9216, v3
    v_lshl_add_u32 v5, v4, 4, v5
    v_add_u32 v5, s10, v5
    s_mul_i32 s11, s2, 36864
    v_lshlrev_b32 v6, 4, v0
    v_add_u32 v6, s11, v6
    s_waitcnt lgkmcnt(0)
    """)
    load_h(a, 60, 61, 4, 8, part=1)
    for i in range(4):
        a("global_load_dwordx4 v[%d:%d], v5, s[6:7] nt" % (100 + 4 * i, 103 + 4 * i))
        if i < 3:
            a("v_add_u32 v5, %d, v5" % (144 * 9216))
    for i in range(4):
        a("global_load_dwordx4 v[%d:%d], v6, s[24:25] nt" % (132 + 4 * i, 135 + 4 * i))
        if i < 3:
            a("v_add_u32 v6, 9216, v6")
    a("""
    v_and_b32 v26, 31, v0
    v_lshlrev_b32 v26, 1, v26
    v_add_u32 v26, s10, v26
    global_load_ushort v99, v26, s[22:23]
    """)
    stamp(a, 1)
    load_h(a, 60, 61, 4, 8, wait=9, part=2)
    stamp(a, 2)
    a("v_mov_b32 v59, v60")
    a("""
    ds_write_b32 v14, v60
    s_waitcnt lgkmcnt(0)
    s_barrier
    v_and_b32 v17, 63, v0
    v_lshlrev_b32 v17, 2, v17
    """)
    for i in range(9):
        a("ds_read_b32 v%d, v17 offset:%d" % (60 + i, i * 256))
    a("s_waitcnt lgkmcnt(0)")
    stamp(a, 3)
    layernorm9(a, 60, 70, 26)
    stamp(a, 4)
    a("s_barrier")
    for i in range(9):
        a("ds_write_b32 v17, v%d offset:%d" % (60 + i, i * 256))
    a("s_waitcnt lgkmcnt(0)")
    a("s_barrier")
    a("v_lshlrev_b32 v18, 2, v3")
    for i in range(4):
        a("ds_read_b32 v%d, v18 offset:%d" % (60 + i, i * 576))
    for j in range(8):
        a("v_mov_b32 v%d, 0" % (40 + j))
    a("s_waitcnt lgkmcnt(0)")
    for i in range(4):
        a("s_waitcnt vmcnt(%d)" % (7 - i))
        for j in range(4):
            w = 100 + 4 * i + j
            a("v_lshlrev_b32 v50, 16, v%d" % w)
            a("v_and_b32 v51, 0xffff0000, v%d" % w)
            a("v_fmac_f32 v%d, v%d, v50" % (40 + 2 * j, 60 + i))
            a("v_fmac_f32 v%d, v%d, v51" % (41 + 2 * j, 60 + i))
    stamp(a, 5)
    for rr in (8, 4):
        a("s_nop 1")
        for n in range(8):
            a("v_add_f32_dpp v%d, v%d, v%d row_ror:%d row_mask:0xf bank_mask:0xf" % (40 + n, 40 + n, 40 + n, rr))
    a("""
    v_and_b32 v21, 63, v0
    v_xor_b32 v22, 16, v21
    v_lshlrev_b32 v22, 2, v22
    v_xor_b32 v23, 32, v21
    v_lshlrev_b32 v23, 2, v23
    """)
    for addr in (22, 23):
        for n in range(8):
            a("ds_bpermute_b32 v%d, v%d, v%d" % (50 + n, addr, 40 + n))
        a("s_waitcnt lgkmcnt(0)")
        for n in range(8):
            a("v_add_f32 v%d, v%d, v%d" % (40 + n, 40 + n, 50 + n))
    a("""
    v_lshrrev_b32 v24, 6, v0
    v_lshlrev_b32 v24, 8, v24
    v_lshl_add_u32 v24, v4, 5, v24
    v_cmp_gt_u32 vcc, 4, v21
    s_and_saveexec_b64 s[16:17], vcc
    ds_write_b128 v24, v[40:43] offset:2304
    ds_write_b128 v24, v[44:47] offset:2320
    s_mov_b64 exec, s[16:17]
    s_waitcnt lgkmcnt(0)
    s_barrier
    v_cmp_gt_u32 vcc, 32, v0
    s_and_saveexec_b64 s[16:17], vcc
    v_lshlrev_b32 v25, 2, v0
    """)
    for w in range(9):
        a("ds_read_b32 v%d, v25 offset:%d" % (40 + w, 2304 + w * 256))
    a("s_waitcnt lgkmcnt(0)")
    for w in range(1, 9):
        a("v_add_f32 v40, v40, v%d" % (40 + w))
    bf16_round(a, 40)
    a("v_lshlrev_b32 v99, 16, v99")
    a("v_add_f32 v40, v40, v99")
    bf16_round(a, 40)
    a("v_max_f32 v40, 0, v40")
    a("v_mul_f32 v40, v40, v40")
    bf16_round(a, 40)
    a("""
    ds_write_b32 v25, v40 offset:4608
    s_mov_b64 exec, s[16:17]
    s_waitcnt lgkmcnt(0)
    s_barrier
    v_lshlrev_b32 v10, 2, v1
    """)
    for i in range(4):
        a("ds_read_b32 v%d, v10 offset:%d" % (60 + i, 4608 + 32 * i))
    for j in range(8):
        a("v_mov_b32 v%d, 0" % (40 + j))
    stamp(a, 6)
    a("s_waitcnt vmcnt(0) lgkmcnt(0)")
    stamp(a, 7)
    for i in range(4):
        for j in range(4):
            w = 132 + 4 * i + j
            a("v_lshlrev_b32 v50, 16, v%d" % w)
            a("v_and_b32 v51, 0xffff0000, v%d" % w)
            a("v_fmac_f32 v%d, v%d, v50" % (40 + 2 * j, 60 + i))
            a("v_fmac_f32 v%d, v%d, v51" % (41 + 2 * j, 60 + i))
    a("""
    v_mul_u32_u24 v13, 2304, v1
    v_lshl_add_u32 v13, v2, 5, v13
    ds_write_b128 v13, v[40:43] offset:4864
    ds_write_b128 v13, v[44:47] offset:4880
    s_waitcnt lgkmcnt(0)
    s_barrier
    v_lshlrev_b32 v14, 2, v0
    """)
    for r in range(8):
        a("ds_read_b32 v%d, v14 offset:%d" % (40 + r, 4864 + r * 2304))
    a("s_waitcnt lgkmcnt(0)")
    for r in range(1, 8):
        a("v_add_f32 v40, v40, v%d" % (40 + r))
    a("""
    s_mul_i32 s21, s20, 2304
    s_add_u32 s21, s21, %d
    v_add_u32 v14, s21, v14
    global_atomic_add_f32 v14, v40, s[8:9]
    """ % WS_A2)
    stamp(a, 8)
    a("s_waitcnt vmcnt(0)")
    stamp(a, 9)
    stamp_flush(a, 10, "K4_SF")
    a("""
    s_waitcnt vmcnt(0)
    s_barrier
    v_cmp_eq_u32 vcc, 0, v0
    s_and_saveexec_b64 s[16:17], vcc
    v_mov_b32 v40, 1
    v_mov_b32 v41, %d
    global_atomic_add v42, v41, v40, s[8:9] sc0
    s_waitcnt vmcnt(0)
    v_mov_b32 v41, 0
    ds_write_b32 v41, v42
    s_mov_b64 exec, s[16:17]
    s_waitcnt lgkmcnt(0)
    s_barrier
    v_mov_b32 v41, 0
    ds_read_b32 v42, v41
    s_waitcnt lgkmcnt(0)
    v_readfirstlane_b32 s33, v42
    s_cmp_lg_u32 s33, 143
    s_cbranch_scc1 K4_END
    v_lshlrev_b32 v14, 2, v0
    v_add_u32 v15, %d, v14
    """ % (WS_END, WS_A2))
    for r in range(16):
        a("global_load_dword v%d, v15, s[8:9] sc0 sc1" % (61 + r))
        if r < 15:
            a("v_add_u32 v15, 2304, v15")
    a("v_lshlrev_b32 v16, 1, v0")
    a("global_load_ushort v77, v16, s[34:35]")
    a("s_waitcnt vmcnt(0)")
    for r in range(1, 16):
        a("v_add_f32 v61, v61, v%d" % (61 + r))
    bf16_round(a, 61)
    a("v_lshlrev_b32 v77, 16, v77")
    a("v_add_f32 v61, v61, v77")
    bf16_round(a, 61)
    a("v_add_f32 v61, v61, v59")
    a("v_cvt_pk_bf16_f32 v61, v61, v61")
    a("global_store_short v16, v61, s[36:37]")
    diag_end(a, 3, "DG3")
    a.label("K4_END")
    a("s_endpgm")
    return name, 168


def gen_k5(a):
    name = "k5_final_kernel"
    kernel_begin(a, name)
    a("""
    s_cmp_ge_u32 s2, 1
    s_cbranch_scc1 K5_END
    s_load_dwordx2 s[4:5], s[0:1], 0
    s_load_dwordx2 s[8:9], s[0:1], 96
    s_load_dwordx2 s[10:11], s[0:1], 72
    s_load_dwordx2 s[12:13], s[0:1], 80
    s_waitcnt lgkmcnt(0)
    """)
    load_h(a, 60, 61, 4, 8)
    a("v_add_u32 v15, %d, v14" % WS_A2)
    for r in range(16):
        a("global_load_dword v%d, v15, s[8:9]" % (61 + r))
        if r < 15:
            a("v_add_u32 v15, 2304, v15")
    a("global_load_ushort v77, v16, s[10:11]")
    a("s_waitcnt vmcnt(0)")
    for r in range(1, 16):
        a("v_add_f32 v61, v61, v%d" % (61 + r))
    bf16_round(a, 61)
    a("v_lshlrev_b32 v77, 16, v77")
    a("v_add_f32 v61, v61, v77")
    bf16_round(a, 61)
    a("v_add_f32 v61, v61, v60")
    a("v_cvt_pk_bf16_f32 v61, v61, v61")
    a("global_store_short v16, v61, s[12:13]")
    a.label("K5_END")
    a("s_endpgm")
    return name, 96


def main():
    a = Asm()
    launches = [
        ("k1_qproj_kernel", 128, 256, 2304 + 8192),
        ("k2_attn_kernel", 256, 512, 33280),
        ("k3_wo_kernel", 256, 576, 64 + 18432),
        ("k4_mlp_kernel", 144, 576, 4864 + 18432),
    ]
    hdr = HEADER
    for k, g, b, l in launches:
        hdr += "; @launch kernel=%s grid=(%d,1,1) block=(%d,1,1) lds=%d\n" % (k, g, b, l)
    a.raw(hdr + '.amdgcn_target "amdgcn-amd-amdhsa--gfx950"\n.text')
    descs = []
    for g in (gen_k1, gen_k2, gen_k3, gen_k4):
        n, v = g(a)
        descs.append(kernel_desc(n, v))
    a.raw('.section .rodata,"a"')
    for d in descs:
        a.raw(".p2align 6")
        a.raw(d)
    open(OUT, "w").write(a.text())
    print("wrote", OUT, len(a.text()), "bytes")


if __name__ == "__main__":
    main()
```
